```python
import torch

def _softmax(x, axis=-1):
    return torch.softmax(x, dim=axis)
def _gelu(x):
    return torch.nn.functional.gelu(x, approximate="tanh")
def _silu(x):
    return torch.nn.functional.silu(x)
def _sigmoid(x):
    return torch.sigmoid(x)
def _layernorm(x, axis=-1, eps=1e-5):
    m = x.mean(dim=axis, keepdim=True)
    v = x.var(dim=axis, keepdim=True, unbiased=False)
    return (x - m) / torch.sqrt(v + eps)
def _scatter_add(tgt, idx, src, axis=0):
    return tgt.clone().index_add_(axis, idx, src)
def _segment_sum(src, seg, n):
    out = torch.zeros((n,) + src.shape[1:], dtype=src.dtype)
    return out.index_add_(0, seg, src)
def _pad(x, pw):
    flat = tuple(v for pair in reversed(pw) for v in pair)
    return torch.nn.functional.pad(x, flat)

kernel_name = 'recurrent_scan__gqa_block_cached__glu_gated_bilinear__prompt'

def setup_inputs():

    _w = (lambda a: (lambda t: t.to(torch.bfloat16) if t.is_floating_point() else t)(torch.as_tensor(a)))
    def _A_setup():
        B, Sq, D = 1, 2048, 448
        Hq, Hkv, Sk, Dh = 16, 8, 2048, 256
        assert Hq % Hkv == 0, (Hq, Hkv)
        return {
            "x": _w((lambda *s: torch.randn(*s, dtype=torch.bfloat16) * 0.05)(B, Sq, D)),
            "k_cache": _w((lambda *s: torch.randn(*s, dtype=torch.bfloat16) * 1.6)(B, Hkv, Sk, Dh)),
            "v_cache": _w((lambda *s: torch.randn(*s, dtype=torch.bfloat16) * 1.6)(B, Hkv, Sk, Dh)),
            "wq": _w((lambda *s: torch.randn(*s, dtype=torch.bfloat16) * 1.6)(D, Hq * Dh) * (D ** -0.5)),
            "wo": _w((lambda *s: torch.randn(*s, dtype=torch.bfloat16) * 1.6)(Hq * Dh, D) * ((Hq * Dh) ** -0.5)),
        }
    _A_in = _A_setup()

    def _B_setup():
        B, S, D, F = 1, 2048, 448, 1792
        return {
            "x": _w((lambda *s: torch.randn(*s, dtype=torch.bfloat16) * 0.05)(B, S, D)),
            "w_gate": _w((lambda *s: torch.randn(*s, dtype=torch.bfloat16) * 0.2)(D, F) * (D ** -0.5)),
            "w_up": _w((lambda *s: torch.randn(*s, dtype=torch.bfloat16) * 0.2)(D, F) * (D ** -0.5)),
            "w_down": _w((lambda *s: torch.randn(*s, dtype=torch.bfloat16) * 0.2)(F, D) * (F ** -0.5)),
        }
    _B_in = _B_setup()

    return {
        "A_x": _A_in["x"],
        "A_k_cache": _A_in["k_cache"],
        "A_v_cache": _A_in["v_cache"],
        "A_wq": _A_in["wq"],
        "A_wo": _A_in["wo"],
        "B_x": _B_in["x"],
        "B_w_gate": _B_in["w_gate"],
        "B_w_up": _B_in["w_up"],
        "B_w_down": _B_in["w_down"],
    }

def reference(A_x, A_k_cache, A_v_cache, A_wq, A_wo, B_x, B_w_gate, B_w_up, B_w_down):
    def _A_ref(x, k_cache, v_cache, wq, wo):
        B, Sq, D = x.shape
        Hq, Dh = 16, 256
        Hkv = k_cache.shape[1]
        rep = Hq // Hkv
        q = (lambda x, *d: x.permute(*d))((x @ wq).reshape(B, Sq, Hq, Dh), 0, 2, 1, 3)
        k = (lambda x, n, axis: torch.repeat_interleave(x, n, dim=axis))(k_cache, rep, axis=1)
        v = (lambda x, n, axis: torch.repeat_interleave(x, n, dim=axis))(v_cache, rep, axis=1)
        scores = torch.einsum("bhqd,bhkd->bhqk", q, k) * (Dh ** -0.5)
        p = _softmax(scores, axis=-1)
        o = torch.einsum("bhqk,bhkd->bhqd", p, v)
        return (lambda x, *d: x.permute(*d))(o, 0, 2, 1, 3).reshape(B, Sq, Hq * Dh) @ wo

    def _B_ref(x, w_gate, w_up, w_down):
        g = torch.einsum("bsd,df->bsf", x, w_gate)
        u = torch.einsum("bsd,df->bsf", x, w_up)
        h = g * u
        return torch.einsum("bsf,fd->bsd", h, w_down)

    x = A_x
    xn = _layernorm(x, axis=-1)
    s = _A_ref(xn, A_k_cache, A_v_cache, A_wq, A_wo)
    g = _silu(_B_ref(xn, B_w_gate, B_w_up, B_w_down))
    return x + s * g
```

```python
class Asm:
    def __init__(self):
        self.lines = []
        self.lds_q = []
        self.vm_q = []

    def e(self, s):
        self.lines.append("    " + s)

    def c(self, s):
        self.lines.append("    ; " + s)

    def label(self, s):
        self.lines.append(s + ":")

    def raw(self, s):
        self.lines.append(s)

    def lds(self, s, tag):
        self.e(s)
        self.lds_q.append(tag)

    def need(self, tag, extra=""):
        idx = [i for i, t in enumerate(self.lds_q) if t == tag]
        if not idx:
            if extra:
                self.e("s_waitcnt " + extra)
            return
        last = idx[-1]
        n = len(self.lds_q) - 1 - last
        assert n <= 15
        self.e(("s_waitcnt lgkmcnt(%d) " % n + extra).strip())
        self.lds_q = self.lds_q[last + 1:]

    def lds_drain(self, extra=""):
        self.e(("s_waitcnt lgkmcnt(0) " + extra).strip())
        self.lds_q = []

    def vm(self, s, tag):
        self.e(s)
        self.vm_q.append(tag)

    def vcount(self, tag):
        idx = [i for i, t in enumerate(self.vm_q) if t == tag]
        if not idx:
            return None
        last = idx[-1]
        n = len(self.vm_q) - 1 - last
        assert n <= 63, n
        self.vm_q = self.vm_q[last + 1:]
        return n

    def vneed(self, tag):
        n = self.vcount(tag)
        if n is not None:
            self.e("s_waitcnt vmcnt(%d)" % n)

    def vdrain(self):
        self.e("s_waitcnt vmcnt(0)")
        self.vm_q = []

    def text(self):
        return "\n".join(self.lines) + "\n"


def v(i, n=1):
    return "v%d" % i if n == 1 else "v[%d:%d]" % (i, i + n - 1)


def a(i, n=1):
    return "a%d" % i if n == 1 else "a[%d:%d]" % (i, i + n - 1)


def s(i, n=1):
    return "s%d" % i if n == 1 else "s[%d:%d]" % (i, i + n - 1)


def kernel_header(name):
    return (".globl %s\n.p2align 8\n.type %s,@function\n%s:\n" % (name, name, name))


def kernel_desc(name, vgpr, accum, sgpr=102, extra=""):
    return (""".amdhsa_kernel %s
  .amdhsa_next_free_vgpr %d
  .amdhsa_next_free_sgpr %d
  .amdhsa_accum_offset %d
  .amdhsa_group_segment_fixed_size 0
  .amdhsa_kernarg_size 96
  .amdhsa_user_sgpr_count 2
  .amdhsa_user_sgpr_kernarg_segment_ptr 1
  .amdhsa_system_sgpr_workgroup_id_x 1
%s.end_amdhsa_kernel
""" % (name, vgpr, sgpr, accum, extra))
```

```python
from asmlib import Asm, v, a, s

CH = 1056
TILE = 16 * CH
SLOT = 2 * TILE
VBASE = 2 * SLOT
LDS_ATT_END = 4 * SLOT

V_KA, V_VA, V_KD, V_VD = 1, 2, 3, 4
V_MX = 5
V_T = 6
V_L = 12
V_F = 16
V_VA1, V_PF, V_DUM = 32, 33, 34
V_NM = 48
V_SP = 64
V_OK = 128

S_SRDK, S_SRDV = 4, 8
S_KO0, S_KO1, S_VO = 21, 22, 23
S_KB, S_VB = 24, 25
S_CNT = 26
S_SRDPF, S_PFO = 56, 62
THRESH = "0x41c00000"
MF = "v_mfma_f32_16x16x32_bf16"


def NM(rt):
    return V_NM + 4 * rt


def SP(p, rt):
    return V_SP + 32 * p + 8 * rt


def Q(rt, ks):
    return 32 * rt + 4 * ks


def O(rt, dbl):
    r = 128 + (rt * 8 + (dbl & 7)) * 4
    return v(r, 4) if dbl < 8 else a(r, 4)


class Soft:
    def __init__(self, p, on=True):
        self.exps = []
        self.ready = []
        self.later = []
        if on:
            for rt in range(4):
                b = SP(p, rt)
                for i in range(8):
                    post = ["v_add_f32 %s, %s, %s" % (v(V_L + rt), v(V_L + rt), v(b + i))]
                    if i & 1:
                        post.append("v_cvt_pk_bf16_f32 %s, %s, %s" % (v(b + (i >> 1)), v(b + i - 1), v(b + i)))
                    self.exps.append(("v_exp_f32 %s, %s" % (v(b + i), v(b + i)), post))
        self.done = 0

    def gap(self, A, free, want_exp):
        self.ready += self.later
        self.later = []
        if free >= 2 and self.exps and want_exp and len(self.ready) <= 3:
            t, post = self.exps.pop(0)
            A.e(t)
            self.later = post
            self.done += 1
            return
        while free > 0 and self.ready:
            A.e(self.ready.pop(0))
            free -= 1

    def empty(self):
        return not (self.exps or self.ready or self.later)

    def flush(self, A):
        while not self.empty():
            had = bool(self.later)
            if had:
                A.e("s_nop 0")
            self.gap(A, 2, True)


class Attn:
    def __init__(self, A, opt=None):
        self.A = A
        self.o = dict(nbuf=4, dma=True, barrier=True, softmax=True, reads=True,
                      dma_start=0, dma_step=4, aux="", chk=30, nexp_b=12, max0=4, bar_back=2, waitgrp=1)
        self.o.update(opt or {})
        self.sm = None

    def F(self, f):
        return V_F + 4 * (f % self.o["nbuf"])

    def read_ops(self, f, kslot, vslot):
        if not self.o["reads"]:
            return []
        r = self.F(f)
        if f < 16:
            ks, kt = f >> 1, f & 1
            return [("ds_read_b128 %s, %s offset:%d" % (v(r, 4), v(V_KA), kslot * SLOT + kt * 8 * CH + 64 * ks), "f%d" % f)]
        db = f - 16
        base = vslot * SLOT + ((db >> 2) & 1) * 4 * CH + (db & 3) * 32
        return [("ds_read_b64_tr_b16 %s, %s offset:%d" % (v(r + 2 * u, 2), v(V_VA if db < 8 else V_VA1), base + u * 512), "f%d" % f)
                for u in range(2)]

    def dma_k(self, tt, slot):
        m0 = slot * SLOT + tt * CH - 1024 * (tt & 3)
        return ["s_add_u32 m0, %s, %d" % (s(S_KB), m0),
                "buffer_load_dwordx4 %s, %s, %s offen offset:%d %s lds" % (
                    v(V_KD), s(S_SRDK, 4), s(S_KO0 if tt < 4 else S_KO1), 1024 * (tt & 3), self.o["aux"])]

    def dma_v(self, qq, slot):
        cbl, c = qq >> 2, qq & 3
        imm = c * 1024 + cbl * 128
        m0 = slot * SLOT + qq * CH - imm
        return ["s_add_u32 m0, %s, %d" % (s(S_VB), m0),
                "buffer_load_dwordx4 %s, %s, %s offen offset:%d %s lds" % (
                    v(V_VD), s(S_SRDV, 4), s(S_VO), imm, self.o["aux"])]

    def emit_dma_block(self, pairs):
        for m0, ld in pairs:
            self.A.e(m0)
            self.A.e("s_nop 0")
            self.A.e(ld)

    def adv_k(self):
        return ["s_add_u32 %s, %s, 16384" % (s(S_KO0), s(S_KO0)),
                "s_add_u32 %s, %s, 16384" % (s(S_KO1), s(S_KO1))]

    def adv_v(self):
        return ["s_add_u32 %s, %s, 16384" % (s(S_VO), s(S_VO))]

    def max_ops(self, p):
        regs = [SP(p, rt) + 4 * kt + i for kt in range(2) for rt in range(4) for i in range(4)]
        ops = ["v_max3_f32 %s, %s, %s, %s" % (v(V_MX), v(regs[0]), v(regs[1]), v(regs[2]))]
        i = 3
        while i < 32:
            r2 = regs[min(i + 1, 31)]
            ops.append("v_max3_f32 %s, %s, %s, %s" % (v(V_MX), v(V_MX), v(regs[i]), v(r2)))
            i += 2
        return ops

    def qk_mfma(self, i, p, first_c):
        f, rt = i >> 2, i & 3
        ks, kt = f >> 1, f & 1
        d = v(SP(p, rt) + 4 * kt, 4)
        c = d if ks else first_c(rt)
        return "%s %s, %s, %s, %s" % (MF, d, v(self.F(f), 4), a(Q(rt, ks), 4), c)

    def pv_mfma(self, i, p):
        db, rt = i >> 2, i & 3
        o = O(rt, db)
        return "%s %s, %s, %s, %s" % (MF, o, v(self.F(16 + db), 4), v(SP(p, rt), 4), o)

    def _need(self, f):
        wg = self.o["waitgrp"]
        if f % wg == 0:
            self.A.need("f%d" % (f + wg - 1))

    def phase_a(self, j, qk=True, first=False, vreads=True, extra=None):
        A, nb = self.A, self.o["nbuf"]
        p, pn = j & 1, (j + 1) & 1
        sm = self.sm
        first_c = (lambda rt: "0") if first else (lambda rt: v(NM(rt), 4))
        bar_at = 63 - 4 * self.o["bar_back"]
        nxt = nb
        pend = []
        nexp = len(sm.exps) if sm else 0
        done0 = sm.done if sm else 0
        last_exp_gap = 52
        for i in range(64):
            if qk:
                if not (i & 3):
                    self._need(i >> 2)
                A.e(self.qk_mfma(i, pn, first_c))
            if i == bar_at:
                assert not pend
                A.lds_drain("vmcnt(0)" if self.o["dma"] else "")
                if self.o["barrier"]:
                    A.e("s_barrier")
            if (i & 3) == 3:
                while nxt <= (i >> 2) + nb and (nxt < 16 or (i >= bar_at and vreads)):
                    if nxt >= 16 or qk:
                        pend += self.read_ops(nxt, pn, p)
                    nxt += 1
            free = 2
            k = min(len(pend), 2 if len(pend) > 2 else 1)
            if i == 63:
                k = len(pend)
            for t, tag in pend[:k]:
                A.lds(t, tag)
                free -= 1
            pend = pend[k:]
            while extra and free > 0:
                A.e(extra.pop(0))
                free -= 1
            if sm:
                want = (sm.done - done0) * last_exp_gap <= i * nexp
                if qk:
                    sm.gap(A, free, want)
                elif not sm.empty():
                    if sm.later:
                        A.e("s_nop 0")
                    sm.gap(A, 2, True)
        if sm:
            assert sm.empty(), (len(sm.exps), sm.ready, sm.later)
        self.sm = None
        self.nxt = nxt

    def phase_b(self, j, check=True, dmas=(), kreads=True, post=(), rare=None, pf=None):
        A, nb = self.A, self.o["nbuf"]
        p, pn = j & 1, (j + 1) & 1
        check = check and self.o["softmax"]
        mo = self.max_ops(pn) if check else []
        chk = self.o["chk"]
        dm0 = {}
        dld = {}
        g = self.o["dma_start"]
        for m0, ld in dmas:
            dm0[g] = m0
            dld[g + 1] = ld
            g += self.o["dma_step"]
        assert g - self.o["dma_step"] + 1 <= 63
        post = list(post)
        nxt = self.nxt
        pend = []
        sm = None
        nmax = len(mo)
        for i in range(64):
            if not (i & 3):
                self._need(16 + (i >> 2))
            A.e(self.pv_mfma(i, p))
            if i == chk and check:
                A.e("s_cbranch_vccnz %s" % rare[0])
                A.label(rare[1])
                sm = Soft(pn)
            if (i & 3) == 3:
                while nxt <= 16 + (i >> 2) + nb and (nxt < 32 or kreads):
                    pend += self.read_ops(nxt % 32, p, p)
                    nxt += 1
            free = 2
            if i == 0 and pf:
                A.e(pf)
                free -= 1
            if i in dld:
                A.e(dld[i])
                free -= 1
            if i in dm0:
                A.e(dm0[i])
            k = min(len(pend), 1, free)
            if i == 63:
                k = len(pend)
            for t, tag in pend[:k]:
                A.lds(t, tag)
                free -= 1
            pend = pend[k:]
            if mo and i >= self.o["max0"]:
                while free > 0 and mo and (nmax - len(mo)) * (chk - 3 - self.o["max0"]) <= (i - self.o["max0"]) * nmax:
                    A.e(mo.pop(0))
                    free -= 1
                    break
            if check and i == chk - 1:
                assert not mo, mo
                A.e("v_cmp_lt_f32 vcc, %s, %s" % (THRESH, v(V_MX)))
            if sm:
                want = sm.done * (63 - chk) <= (i - chk) * self.o["nexp_b"] and sm.done < self.o["nexp_b"]
                sm.gap(A, free, want)
            if post and i > g - self.o["dma_step"] + 1 or (post and i == 63):
                if i == 63:
                    for t in post:
                        A.e(t)
                    post = []
                else:
                    A.e(post.pop(0))
        self.sm = sm

    def rowmax(self, p, rt, dst, tmp):
        A = self.A
        b = SP(p, rt)
        A.e("v_max3_f32 %s, %s, %s, %s" % (v(dst), v(b), v(b + 1), v(b + 2)))
        A.e("v_max3_f32 %s, %s, %s, %s" % (v(dst), v(dst), v(b + 3), v(b + 4)))
        A.e("v_max3_f32 %s, %s, %s, %s" % (v(dst), v(dst), v(b + 5), v(b + 6)))
        A.e("v_max_f32 %s, %s, %s" % (v(dst), v(dst), v(b + 7)))
        for sw in ("v_permlane16_swap_b32", "v_permlane32_swap_b32"):
            A.e("v_mov_b32 %s, %s" % (v(tmp), v(dst)))
            A.e("s_nop 1")
            A.e("%s %s, %s" % (sw, v(tmp), v(dst)))
            A.e("s_nop 1")
            A.e("v_max_f32 %s, %s, %s" % (v(dst), v(dst), v(tmp)))

    def init_max(self, p):
        A = self.A
        A.e("s_nop 7")
        for rt in range(4):
            self.rowmax(p, rt, V_T, V_T + 1)
            b = SP(p, rt)
            for i in range(4):
                A.e("v_sub_f32 %s, 0, %s" % (v(NM(rt) + i), v(V_T)))
            for i in range(8):
                A.e("v_sub_f32 %s, %s, %s" % (v(b + i), v(b + i), v(V_T)))
            A.e("v_mov_b32 %s, 0" % v(V_L + rt))
        A.e("s_nop 1")
        self.sm = Soft(p, self.o["softmax"])

    def rare_path(self, p, name, back):
        A = self.A
        A.label(name)
        A.e("s_nop 7")
        T = V_T
        for rt in range(4):
            self.rowmax(p, rt, T, T + 1)
            A.e("v_max_f32 %s, 0, %s" % (v(T), v(T)))
            A.e("v_ceil_f32 %s, %s" % (v(T), v(T)))
            A.e("v_cvt_i32_f32 %s, -%s" % (v(T + 1), v(T)))
            A.e("v_ldexp_f32 %s, 1.0, %s" % (v(T + 1), v(T + 1)))
            b = SP(p, rt)
            for i in range(4):
                A.e("v_sub_f32 %s, %s, %s" % (v(NM(rt) + i), v(NM(rt) + i), v(T)))
            for i in range(8):
                A.e("v_sub_f32 %s, %s, %s" % (v(b + i), v(b + i), v(T)))
            A.e("v_mul_f32 %s, %s, %s" % (v(V_L + rt), v(V_L + rt), v(T + 1)))
            pb = SP(p ^ 1, rt)
            for i in range(4):
                A.e("v_lshlrev_b32 %s, 16, %s" % (v(T + 2), v(pb + i)))
                A.e("v_and_b32 %s, 0xffff0000, %s" % (v(T + 3), v(pb + i)))
                A.e("v_mul_f32 %s, %s, %s" % (v(T + 2), v(T + 2), v(T + 1)))
                A.e("v_mul_f32 %s, %s, %s" % (v(T + 3), v(T + 3), v(T + 1)))
                A.e("v_cvt_pk_bf16_f32 %s, %s, %s" % (v(pb + i), v(T + 2), v(T + 3)))
            for i in range(32):
                r = 128 + rt * 32 + i
                A.e("v_mul_f32 %s, %s, %s" % (v(r), v(r), v(T + 1)))
            for i in range(0, 32, 4):
                r = 128 + rt * 32 + i
                for k in range(4):
                    A.e("v_accvgpr_read_b32 %s, %s" % (v(T + 2 + k), a(r + k)))
                for k in range(4):
                    A.e("v_mul_f32 %s, %s, %s" % (v(T + 2 + k), v(T + 2 + k), v(T + 1)))
                for k in range(4):
                    A.e("v_accvgpr_write_b32 %s, %s" % (a(r + k), v(T + 2 + k)))
        A.e("s_nop 1")
        A.e("s_branch %s" % back)

    def dma_list(self, j, k=True, vv=True):
        if not self.o["dma"]:
            return []
        lst = []
        if vv:
            lst += [self.dma_v(q, (j + 1) & 1) for q in range(8)]
        if k:
            lst += [self.dma_k(t, (j + 1) & 1) for t in range(8)]
        return lst

    def setup_addresses(self, s_hh, s_kh, vlane, t0):
        A = self.A
        t1, t2, t3 = t0 + 1, t0 + 2, t0 + 3
        A.e("v_bfe_u32 %s, %s, 1, 3" % (v(t1), v(vlane)))
        A.e("v_mul_u32_u24 %s, %d, %s" % (v(V_KA), CH, v(t1)))
        A.e("v_and_b32 %s, 1, %s" % (v(t1), v(vlane)))
        A.e("v_lshrrev_b32 %s, 4, %s" % (v(t2), v(vlane)))
        A.e("v_xor_b32 %s, %s, %s" % (v(t3), v(t1), v(t2)))
        A.e("v_lshlrev_b32 %s, 4, %s" % (v(t3), v(t3)))
        A.e("v_lshl_add_u32 %s, %s, 9, %s" % (v(t3), v(t1), v(t3)))
        A.e("v_add_u32 %s, %s, %s" % (v(V_KA), v(V_KA), v(t3)))
        A.e("s_mul_i32 s27, %s, %d" % (s(s_kh), TILE))
        A.e("v_add_u32 %s, s27, %s" % (v(V_KA), v(V_KA)))
        A.e("v_and_b32 %s, 31, %s" % (v(t0), v(vlane)))
        A.e("v_lshrrev_b32 %s, 5, %s" % (v(t2), v(vlane)))
        A.e("v_xor_b32 %s, %s, %s" % (v(t3), v(t0), v(t2)))
        A.e("v_lshlrev_b32 %s, 4, %s" % (v(t3), v(t3)))
        A.e("v_lshl_add_u32 %s, %s, 9, %s" % (v(t3), v(t2), v(t3)))
        A.e("s_lshl_b32 s28, %s, 13" % s(s_hh))
        A.e("v_add_u32 %s, s28, %s" % (v(V_KD), v(t3)))
        A.e("s_mul_i32 s29, %s, %d" % (s(s_hh), 8 * CH))
        A.e("s_add_u32 %s, s27, s29" % s(S_KB))
        A.e("s_add_u32 %s, %s, %d" % (s(S_VB), s(S_KB), VBASE))
        A.e("v_bfe_u32 %s, %s, 3, 2" % (v(t0), v(vlane)))
        A.e("v_mul_u32_u24 %s, %d, %s" % (v(V_VA), CH, v(t0)))
        A.e("v_bfe_u32 %s, %s, 2, 1" % (v(t0), v(vlane)))
        A.e("v_lshl_add_u32 %s, %s, 1, %s" % (v(t0), v(t2), v(t0)))
        A.e("v_lshl_add_u32 %s, %s, 7, %s" % (v(V_VA), v(t0), v(V_VA)))
        A.e("v_and_b32 %s, 3, %s" % (v(t0), v(vlane)))
        A.e("v_lshl_add_u32 %s, %s, 3, %s" % (v(V_VA), v(t0), v(V_VA)))
        A.e("s_add_u32 s27, s27, %d" % VBASE)
        A.e("s_mul_i32 s29, %s, %d" % (s(s_kh), 8 * CH))
        A.e("s_sub_u32 s28, s27, s29")
        A.e("s_add_u32 s28, s28, %d" % (8 * CH))
        A.e("s_add_u32 s27, s27, s29")
        A.e("v_add_u32 %s, s28, %s" % (v(V_VA1), v(V_VA)))
        A.e("v_add_u32 %s, s27, %s" % (v(V_VA), v(V_VA)))
        A.e("v_lshrrev_b32 %s, 4, %s" % (v(t0), v(vlane)))
        A.e("v_lshlrev_b32 %s, 3, %s" % (v(t0), v(t0)))
        A.e("v_bfe_u32 %s, %s, 3, 1" % (v(t1), v(vlane)))
        A.e("v_add_u32 %s, %s, %s" % (v(t0), v(t0), v(t1)))
        A.e("v_and_b32 %s, 7, %s" % (v(t1), v(vlane)))
        A.e("v_lshlrev_b32 %s, 4, %s" % (v(t1), v(t1)))
        A.e("v_lshl_add_u32 %s, %s, 9, %s" % (v(t0), v(t0), v(t1)))
        A.e("s_lshl_b32 s28, %s, 8" % s(s_hh))
        A.e("v_add_u32 %s, s28, %s" % (v(V_VD), v(t0)))

    def prologue_dma(self):
        A = self.A
        A.e("s_mov_b32 %s, 0" % s(S_KO0))
        A.e("s_mov_b32 %s, 4096" % s(S_KO1))
        A.e("s_mov_b32 %s, 0" % s(S_VO))
        self.emit_dma_block([self.dma_k(t, 0) for t in range(8)])
        for t in self.adv_k():
            A.e(t)
        self.emit_dma_block([self.dma_k(t, 1) for t in range(8)])
        for t in self.adv_k():
            A.e(t)
        self.emit_dma_block([self.dma_v(q, 0) for q in range(8)])
        for t in self.adv_v():
            A.e(t)

    def pf_op(self):
        if not self.o.get("roll", True):
            return None
        return "buffer_load_dword %s, %s, %s, %s offen" % (v(V_DUM), v(V_PF), s(S_SRDPF, 4), s(S_PFO))

    def main(self, extra=None):
        A, nb = self.A, self.o["nbuf"]
        for f in range(nb):
            for t, tag in self.read_ops(f, 0, 0):
                A.lds(t, tag)
        self.phase_a(-1, first=True, vreads=False, extra=extra)
        for t in extra or []:
            A.e(t)
        if self.o["dma"]:
            self.emit_dma_block([self.dma_k(t, 0) for t in range(8)])
        for t in self.adv_k():
            A.e(t)
        for f in range(nb):
            for t, tag in self.read_ops(f, 1, 0):
                A.lds(t, tag)
        self.init_max(0)
        sm = self.sm
        ref = self._steady_state()
        while sm.done < ref[0] or len(sm.ready) + len(sm.later) > ref[1]:
            if sm.later:
                A.e("s_nop 0")
            if sm.done < ref[0]:
                sm.gap(A, 2, True)
            else:
                sm.gap(A, 1, False)
        state = (sm.done, list(sm.ready + sm.later))
        entry_q = list(A.lds_q)
        A.e("s_mov_b32 %s, 0" % s(S_CNT))
        A.raw(".p2align 3")
        A.label("L_att_loop")
        for jj in range(2):
            self.phase_a(jj)
            post = self.adv_k() + self.adv_v() + ["s_add_u32 %s, %s, 16384" % (s(S_PFO), s(S_PFO))]
            if jj == 1:
                post += ["s_add_u32 %s, %s, 1" % (s(S_CNT), s(S_CNT)), "s_cmp_lt_u32 %s, 15" % s(S_CNT)]
            self.phase_b(jj, dmas=self.dma_list(jj), post=post, rare=("L_rare%d" % jj, "L_back%d" % jj), pf=self.pf_op())
            assert A.lds_q == entry_q, (A.lds_q, entry_q)
        if self.sm:
            assert (self.sm.done, list(self.sm.ready + self.sm.later)) == state, (state, self.sm.done, self.sm.ready, self.sm.later)
        A.e("s_cbranch_scc1 L_att_loop")
        self.phase_a(30)
        self.phase_b(30, dmas=self.dma_list(30, k=False), kreads=False, rare=("L_rare2", "L_back2"), pf=self.o.get("pf30"))
        self.phase_a(31, qk=False)
        A.e("s_nop 1")
        self.phase_b(31, check=False, kreads=False)

    def _steady_state(self):
        if not self.o["softmax"]:
            return (0, 0)
        tmp = Attn(Asm(), self.o)
        tmp.nxt = 16 + self.o["nbuf"]
        tmp.phase_b(1, dmas=tmp.dma_list(1), rare=("x", "y"), pf=tmp.pf_op())
        return (tmp.sm.done, len(tmp.sm.ready) + len(tmp.sm.later))

    def rare_paths(self):
        if not self.o["softmax"]:
            return
        self.rare_path(1, "L_rare0", "L_back0")
        self.rare_path(0, "L_rare1", "L_back1")
        self.rare_path(1, "L_rare2", "L_back2")
```

```python
import sys, json
from asmlib import *
from attn16 import *

BASE = "recurrent_scan__gqa_block_cached__glu_gated_bilinear__prompt"
KMAIN = BASE + "_kernel"
KRED = "final_reduce_kernel"

HS = 4 * CH
RING_P, NS_P = 57344, 6
RING_O, NS_O = 65536, 5
ML_BASE = 131072
SIGMA = 5

V_FA = 16
V_FB = 36
V_H = 68
V_OFF_GU = 100
V_OFF_Q = 104
V_OFF_D = 112
V_WA, V_BA = 120, 121
V_ST = 122
V_OFF_O = 104
S_W, S_HH, S_KH, S_G, S_RB = 16, 17, 18, 19, 20
S_WS = 12
S_X, S_WG, S_WU, S_WQ, S_WD, S_WO = 32, 36, 40, 44, 48, 52
S_RING, S_SO = 60, 61
S_STAMP = 64
PD_OFF, PS_OFF = 0, 0x1000000
PART = 56 * 1024
QSCALE = 1.4426950408889634 / 16.0


def fbits(x):
    import struct
    return "0x%08x" % struct.unpack("<I", struct.pack("<f", x))[0]


def ACC(t, rt):
    return 128 + (t * 4 + rt) * 4


class Phase:
    def __init__(self, name, nk, srd0, srd1, off0, off1, stride, act):
        self.name, self.nk, self.srd, self.off, self.stride, self.act = name, nk, (srd0, srd1), (off0, off1), stride, act


class Stream:
    def __init__(self, A, phases, ns, sigma):
        self.A, self.ns, self.sigma = A, ns, sigma
        self.hs = []
        gk = 0
        for ph in phases:
            for ks in range(ph.nk):
                for cb in range(2):
                    self.hs.append((ph, ks, cb, gk))
                gk += 1
        self.lead = ns - 1
        self.pend = []

    def slot(self, h):
        return ((h + self.sigma) % self.ns) * HS

    def dma_ops(self, h):
        if h >= len(self.hs):
            return []
        ph, ks, cb, gk = self.hs[h]
        out = []
        for c in range(4):
            pre = []
            if c == 0 and cb == 0:
                pre.append("s_mov_b32 %s, %d" % (s(S_SO), ks * 32 * ph.stride))
            pre.append("s_add_u32 m0, %s, %d" % (s(S_RING), self.slot(h) + c * CH))
            ld = "buffer_load_dwordx4 %s, %s, %s offen lds" % (v(ph.off[cb] + c), s(ph.srd[cb], 4), s(S_SO))
            out.append((pre, ld, "w%d" % h))
        return out

    def issue_initial(self):
        for h in range(self.lead):
            for pre, ld, tag in self.dma_ops(h):
                for t in pre:
                    self.A.e(t)
                self.A.e("s_nop 0")
                self.A.vm(ld, tag)

    def a_reads(self, h, x):
        if h >= len(self.hs):
            return []
        return [("ds_read_b64_tr_b16 %s, %s offset:%d" % (v(V_FA + 4 * x + 2 * u, 2), v(V_WA), self.slot(h) + x * 32 + u * 512),
                 "a%d_%d" % (h, x)) for u in range(2)]

    def b_reads(self, ph, ks, gk):
        return [("ds_read_b128 %s, %s offset:%d" % (v(V_FB + 16 * (gk & 1) + 4 * rt, 4), v(V_BA), ph.act + ks * 4096 + rt * 256),
                 "b%d" % gk) for rt in range(4)]

    def first_a(self):
        A = self.A
        A.vneed("w0")
        for x in range(4):
            for t, tag in self.a_reads(0, x):
                A.lds(t, tag)

    def first_b(self, h):
        ph, ks, cb, gk = self.hs[h]
        for t, tag in self.b_reads(ph, ks, gk):
            self.A.lds(t, tag)

    def period(self, h, extra=None, b_next=True):
        A = self.A
        ph, ks, cb, gk = self.hs[h]
        dm = self.dma_ops(h + self.lead)
        br = []
        if cb == 1 and b_next and h + 1 < len(self.hs):
            nph, nks, _, ngk = self.hs[h + 1]
            br = self.b_reads(nph, nks, ngk)
        for i in range(16):
            x, rt = i >> 2, i & 3
            if rt == 0:
                if x == 0 and cb == 0:
                    A.need("b%d" % gk)
                A.need("a%d_%d" % (h, x))
            acc = v(ACC(4 * cb + x, rt), 4)
            A.e("%s %s, %s, %s, %s" % (MF, acc, v(V_FA + 4 * x, 4), v(V_FB + 16 * (gk & 1) + 4 * rt, 4), acc if ks else "0"))
            free = 2
            if rt == 3:
                if x == 0:
                    A.vneed("w%d" % (h + 1))
                self.pend += self.a_reads(h + 1, x)
            if self.pend:
                t, tag = self.pend.pop(0)
                A.lds(t, tag)
                free -= 1
            if rt == 0 and dm:
                for t in dm[x][0]:
                    A.e(t)
            if rt == 1 and dm:
                A.vm(dm[x][1], dm[x][2])
                free -= 1
            if rt == 2 and br:
                t, tag = br[x]
                A.lds(t, tag)
                free -= 1
            if extra and free > 0:
                A.e(extra.pop(0))

    def flush_pend(self):
        for t, tag in self.pend:
            self.A.lds(t, tag)
        self.pend = []

    def run_phase(self, name, extra=None, b_next_last=True):
        idx = [h for h, e in enumerate(self.hs) if e[0].name == name]
        for h in idx:
            self.period(h, extra, b_next=(b_next_last or h != idx[-1]))
        self.flush_pend()
        return idx[-1] + 1


def make_srd(A, sreg, karg_reg, size, off_sreg=None, zero_if_g7=False):
    if off_sreg is not None:
        A.e("s_add_u32 %s, %s, %s" % (s(sreg), s(sreg), s(off_sreg)))
        A.e("s_addc_u32 %s, %s, 0" % (s(sreg + 1), s(sreg + 1)))
        A.e("s_sub_u32 %s, %d, %s" % (s(sreg + 2), size, s(off_sreg)))
    else:
        A.e("s_mov_b32 %s, %d" % (s(sreg + 2), size))
    if zero_if_g7:
        A.e("s_cmp_eq_u32 %s, 7" % s(S_G))
        A.e("s_cselect_b32 %s, 0, %s" % (s(sreg + 2), s(sreg + 2)))
    A.e("s_mov_b32 %s, 0x20000" % s(sreg + 3))


def voffsets(A, dst0, dst1, stride, natural, colshift, t0, oob_w3):
    t1, t2 = t0 + 1, t0 + 2
    A.e("v_bfe_u32 %s, v0, 3, 1" % v(t0))
    A.e("v_bfe_u32 %s, v0, 4, 1" % v(t1))
    A.e("v_lshl_add_u32 %s, %s, %d, %s" % (v(t0), v(t1), 4 if natural else 3, v(t0)))
    A.e("v_lshrrev_b32 %s, 5, v0" % v(t1))
    A.e("v_lshl_add_u32 %s, %s, %d, %s" % (v(t0), v(t1), 2 if natural else 4, v(t0)))
    A.e("v_mul_u32_u24 %s, %d, %s" % (v(t0), stride, v(t0)))
    A.e("v_and_b32 %s, 7, v0" % v(t1))
    A.e("v_lshl_add_u32 %s, %s, 4, %s" % (v(t0), v(t1), v(t0)))
    A.e("s_lshl_b32 s27, %s, %d" % (s(S_W), colshift))
    A.e("v_add_u32 %s, s27, %s" % (v(dst0), v(t0)))
    for c in range(1, 4):
        g0, r1 = c >> 1, c & 1
        rows = (8 if natural else 4) * g0 + 2 * r1
        A.e("v_add_u32 %s, %d, %s" % (v(dst0 + c), rows * stride, v(dst0)))
    if dst1 is not None:
        if oob_w3:
            A.e("s_cmp_eq_u32 %s, 3" % s(S_W))
            A.e("s_cselect_b32 s27, 0x40000000, 128")
        else:
            A.e("s_mov_b32 s27, 128")
        for c in range(4):
            A.e("v_add_u32 %s, s27, %s" % (v(dst1 + c), v(dst0 + c)))


def wa_lane(A, dst, t0):
    A.e("v_bfe_u32 %s, v0, 3, 2" % v(t0))
    A.e("v_mul_u32_u24 %s, %d, %s" % (v(dst), CH, v(t0)))
    A.e("v_bfe_u32 %s, v0, 2, 1" % v(t0))
    A.e("v_lshl_add_u32 %s, %s, 7, %s" % (v(dst), v(t0), v(dst)))
    A.e("v_lshrrev_b32 %s, 5, v0" % v(t0))
    A.e("v_lshl_add_u32 %s, %s, 8, %s" % (v(dst), v(t0), v(dst)))
    A.e("v_and_b32 %s, 3, v0" % v(t0))
    A.e("v_lshl_add_u32 %s, %s, 3, %s" % (v(dst), v(t0), v(dst)))


def xreduce(A, op, r, tmp):
    for sw in ("v_permlane16_swap_b32", "v_permlane32_swap_b32"):
        A.e("v_mov_b32 %s, %s" % (v(tmp), v(r)))
        A.e("s_nop 1")
        A.e("%s %s, %s" % (sw, v(tmp), v(r)))
        A.e("s_nop 1")
        A.e("%s %s, %s, %s" % (op, v(r), v(r), v(tmp)))


def round_bf16(A, r):
    A.e("v_cvt_pk_bf16_f32 %s, %s, %s" % (v(r), v(r), v(r)))
    A.e("v_lshlrev_b32 %s, 16, %s" % (v(r), v(r)))


def store_partial(A, base_off, tmp, skip_label):
    A.e("s_lshl_b32 s27, %s, 5" % s(S_G))
    A.e("s_add_u32 s27, s27, %s" % s(S_RB))
    A.e("s_mul_i32 s27, s27, %d" % PART)
    A.e("s_lshl_b32 s28, %s, 14" % s(S_W))
    A.e("s_add_u32 s27, s27, s28")
    A.e("s_add_u32 s27, s27, %d" % base_off)
    for tp in range(4):
        if tp == 2:
            A.e("s_cmp_eq_u32 %s, 3" % s(S_W))
            A.e("s_cbranch_scc1 %s" % skip_label)
        for rt in range(4):
            d = tmp + (tp * 4 + rt) * 4
            for k in range(2):
                r = ACC(2 * tp + k, rt)
                A.e("v_cvt_pk_bf16_f32 %s, %s, %s" % (v(d + 2 * k), v(r), v(r + 1)))
                A.e("v_cvt_pk_bf16_f32 %s, %s, %s" % (v(d + 2 * k + 1), v(r + 2), v(r + 3)))
            A.e("buffer_store_dwordx4 %s, %s, %s, s27 offen offset:%d" % (v(d, 4), v(V_ST), s(S_WS, 4), rt * 1024))
        if tp < 3:
            A.e("s_add_u32 s27, s27, 4096")
    A.label(skip_label)


def gen_main(A, o):
    nst = [0]

    def stamp():
        if o.get("stamps"):
            A.e("s_memtime %s" % s(S_STAMP + 2 * nst[0], 2))
            nst[0] += 1

    A.raw(kernel_header(KMAIN))
    A.e("s_cmp_ge_u32 s2, 256")
    A.e("s_cbranch_scc1 L_done")
    if o.get("stamps"):
        A.e("s_memrealtime s[96:97]")
    stamp()
    A.e("s_load_dwordx2 %s, s[0:1], 0" % s(S_X, 2))
    A.e("s_load_dwordx2 %s, s[0:1], 48" % s(S_WG, 2))
    A.e("s_load_dwordx2 %s, s[0:1], 56" % s(S_WU, 2))
    A.e("s_load_dwordx2 %s, s[0:1], 24" % s(S_WQ, 2))
    A.e("s_load_dwordx2 %s, s[0:1], 64" % s(S_WD, 2))
    A.e("s_load_dwordx2 %s, s[0:1], 32" % s(S_WO, 2))
    A.e("s_load_dwordx2 %s, s[0:1], 8" % s(S_SRDK, 2))
    A.e("s_load_dwordx2 %s, s[0:1], 16" % s(S_SRDV, 2))
    A.e("s_load_dwordx2 %s, s[0:1], 88" % s(S_WS, 2))
    A.e("v_lshrrev_b32 v6, 6, v0")
    A.e("v_and_b32 v0, 63, v0")
    A.e("v_readfirstlane_b32 %s, v6" % s(S_W))
    A.e("s_and_b32 %s, s2, 7" % s(S_G))
    A.e("s_lshr_b32 %s, s2, 3" % s(S_RB))
    A.e("s_and_b32 %s, %s, 1" % (s(S_HH), s(S_W)))
    A.e("s_lshr_b32 %s, %s, 1" % (s(S_KH), s(S_W)))
    A.e("v_and_b32 v7, 15, v0")
    A.e("v_lshrrev_b32 v8, 4, v0")
    A.e("v_mul_u32_u24 v9, 896, v7")
    A.e("v_lshl_add_u32 v9, v8, 4, v9")
    A.e("s_lshl_b32 s27, %s, 2" % s(S_RB))
    A.e("s_add_u32 s27, s27, %s" % s(S_W))
    A.e("s_mul_i32 s30, s27, %d" % (16 * 896))
    A.e("v_lshlrev_b32 %s, 4, v7" % v(V_BA))
    A.e("v_lshl_add_u32 %s, v8, 10, %s" % (v(V_BA), v(V_BA)))
    A.e("v_lshlrev_b32 %s, 4, v0" % v(V_ST))
    voffsets(A, V_OFF_GU, None, 3584, True, 7, 10, False)
    A.e("s_mul_i32 %s, %s, %d" % (s(S_RING), s(S_W), NS_P * HS))
    A.e("s_add_u32 %s, %s, %d" % (s(S_RING), s(S_RING), RING_P))
    A.e("s_waitcnt lgkmcnt(0)")
    make_srd(A, S_X, None, 2048 * 896)
    RAW = 36
    for t in range(14):
        A.vm("buffer_load_dwordx4 %s, v9, %s, s30 offen offset:%d" % (v(RAW + 4 * t, 4), s(S_X, 4), t * 64), "x")
    A.e("s_lshl_b32 s29, %s, 9" % s(S_G))
    make_srd(A, S_WG, None, 448 * 3584, 29, True)
    make_srd(A, S_WU, None, 448 * 3584, 29, True)
    GU = Phase("gu", 14, S_WG, S_WU, V_OFF_GU, V_OFF_GU, 3584, 0)
    QP = Phase("q", 14, S_WQ, S_WQ, V_OFF_Q, V_OFF_Q + 4, 8192, 0)
    DP = Phase("d", 8, S_WD, S_WD, V_OFF_D, V_OFF_D + 4, 896, 0)
    st = Stream(A, [GU, QP, DP], NS_P, SIGMA)
    st.issue_initial()
    A.e("s_lshl_b32 s29, %s, 10" % s(S_G))
    make_srd(A, S_WQ, None, 448 * 8192, 29)
    A.e("s_mul_i32 s29, %s, %d" % (s(S_G), 256 * 896))
    make_srd(A, S_WD, None, 1792 * 896, 29, True)
    A.e("s_mul_i32 s29, %s, %d" % (s(S_G), 512 * 896))
    make_srd(A, S_WO, None, 4096 * 896, 29)
    if o.get("pf", 1):
        A.e("s_mul_i32 s27, %s, 14" % s(S_RB))
        A.e("v_add_u32 v10, s27, v0")
        A.e("v_mul_u32_u24 v11, 3584, v10")
        A.e("s_lshl_b32 s28, %s, 7" % s(S_W))
        A.e("s_mov_b64 exec, 0x3fff")
        A.vm("buffer_load_dword %s, v11, %s, s28 offen" % (v(V_DUM), s(S_WG, 4)), "pf")
        A.vm("buffer_load_dword %s, v11, %s, s28 offen" % (v(V_DUM), s(S_WU, 4)), "pf")
        A.e("v_lshlrev_b32 v11, 13, v10")
        A.e("s_lshl_b32 s28, %s, 8" % s(S_W))
        A.vm("buffer_load_dword %s, v11, %s, s28 offen" % (v(V_DUM), s(S_WQ, 4)), "pf")
        A.vm("buffer_load_dword %s, v11, %s, s28 offen offset:128" % (v(V_DUM), s(S_WQ, 4)), "pf")
        A.e("s_lshl_b32 s27, %s, 2" % s(S_RB))
        A.e("s_add_u32 s27, s27, %s" % s(S_W))
        A.e("s_mul_i32 s28, s27, %d" % (14 * 128))
        A.e("v_lshlrev_b32 v11, 7, v0")
        A.vm("buffer_load_dword %s, v11, %s, s28 offen" % (v(V_DUM), s(S_WD, 4)), "pf")
        A.e("s_mov_b64 exec, -1")
    if o.get("cpf", 1):
        A.e("s_getpc_b64 s[28:29]")
        A.label("L_pc")
        A.e("s_lshl_b32 s27, %s, 2" % s(S_RB))
        A.e("s_add_u32 s27, s27, %s" % s(S_W))
        A.e("s_mul_i32 s27, s27, 5")
        A.e("v_add_u32 v10, s27, v0")
        A.e("v_min_u32 v10, (L_hot_end - L_pc) / 128, v10")
        A.e("v_lshlrev_b32 v10, 7, v10")
        A.e("v_mov_b32 v11, s29")
        A.e("v_add_co_u32 v10, vcc, s28, v10")
        A.e("s_nop 1")
        A.e("v_addc_co_u32 v11, vcc, 0, v11, vcc")
        A.e("s_mov_b64 exec, 0x1f")
        A.vm("global_load_dword %s, v[10:11], off" % v(V_DUM), "pf")
        A.e("s_mov_b64 exec, -1")
    voffsets(A, V_OFF_Q, V_OFF_Q + 4, 8192, True, 8, 10, False)
    voffsets(A, V_OFF_D, V_OFF_D + 4, 896, False, 8, 10, True)
    wa_lane(A, V_WA, 10)
    A.e("v_add_u32 %s, %s, %s" % (v(V_WA), s(S_RING), v(V_WA)))
    A.e("s_lshl_b32 s27, %s, 20" % s(S_G))
    A.e("s_lshl_b32 s28, %s, 19" % s(S_KH))
    A.e("s_add_u32 s29, s27, s28")
    make_srd(A, S_SRDK, None, 0x800000, 29)
    make_srd(A, S_SRDV, None, 0x800000, 29)
    A.e("s_mov_b32 %s, 0x10000000" % s(S_WS + 2))
    A.e("s_mov_b32 %s, 0x20000" % s(S_WS + 3))
    A.e("s_cmp_eq_u32 %s, 0" % s(S_HH))
    A.e("s_cselect_b32 %s, %s, %s" % (s(S_SRDPF), s(S_SRDK), s(S_SRDV)))
    A.e("s_cselect_b32 %s, %s, %s" % (s(S_SRDPF + 1), s(S_SRDK + 1), s(S_SRDV + 1)))
    A.e("s_mov_b32 %s, 0x80000" % s(S_SRDPF + 2))
    A.e("s_mov_b32 %s, 0x20000" % s(S_SRDPF + 3))
    at = Attn(A, o.get("attn"))
    at.setup_addresses(S_HH, S_KH, 0, 10)
    A.e("s_lshl_b32 s27, %s, 9" % s(S_RB))
    A.e("v_lshlrev_b32 v10, 7, v0")
    A.e("v_add_u32 v10, s27, v10")
    A.e("v_mov_b32 v11, 0x40000000")
    A.e("v_cmp_gt_u32 vcc, 4, v0")
    A.e("s_nop 1")
    A.e("v_cndmask_b32 %s, v11, v10, vcc" % v(V_PF))
    A.e("s_mov_b32 %s, %d" % (s(S_PFO), 8 * 16384))

    D0 = 128
    A.vneed("x")
    stamp()
    for k in range(56):
        A.e("v_lshlrev_b32 %s, 16, %s" % (v(D0 + 2 * k), v(RAW + k)))
        A.e("v_and_b32 %s, 0xffff0000, %s" % (v(D0 + 2 * k + 1), v(RAW + k)))
        if k >= 2:
            if k == 2:
                A.e("v_pk_add_f32 v[6:7], %s, %s" % (v(D0, 2), v(D0 + 2, 2)))
            else:
                A.e("v_pk_add_f32 v[6:7], v[6:7], %s" % v(D0 + 2 * (k - 1), 2))
    A.e("v_pk_add_f32 v[6:7], v[6:7], %s" % v(D0 + 110, 2))
    A.e("v_add_f32 v6, v6, v7")
    xreduce(A, "v_add_f32", 6, 7)
    A.e("v_mul_f32 v6, %s, v6" % fbits(1.0 / 448))
    A.e("v_mov_b32 v8, v6")
    round_bf16(A, 8)
    A.e("v_sub_f32 v12, v6, v8")
    for k in range(56):
        d = v(D0 + 2 * k, 2)
        A.e("v_pk_add_f32 %s, %s, v[8:9] op_sel_hi:[1,0] neg_lo:[0,1] neg_hi:[0,1]" % (d, d))
        if k == 1:
            A.e("v_pk_mul_f32 v[10:11], %s, %s" % (v(D0, 2), v(D0, 2)))
        elif k > 1:
            dp = v(D0 + 2 * (k - 1), 2)
            A.e("v_pk_fma_f32 v[10:11], %s, %s, v[10:11]" % (dp, dp))
    A.e("v_pk_fma_f32 v[10:11], %s, %s, v[10:11]" % (v(D0 + 110, 2), v(D0 + 110, 2)))
    A.e("v_add_f32 v10, v10, v11")
    xreduce(A, "v_add_f32", 10, 11)
    A.e("v_mul_f32 v10, %s, v10" % fbits(1.0 / 448))
    A.e("v_fma_f32 v10, -v12, v12, v10")
    round_bf16(A, 10)
    A.e("v_add_f32 v10, %s, v10" % fbits(1e-5))
    round_bf16(A, 10)
    A.e("v_sqrt_f32 v10, v10")
    A.e("s_nop 0")
    round_bf16(A, 10)
    A.e("v_rcp_f32 v10, v10")
    A.e("s_lshl_b32 s27, %s, 8" % s(S_W))
    A.e("v_add_u32 v12, s27, %s" % v(V_BA))
    for t in range(14):
        for k in range(4 * t, 4 * t + 4):
            d = v(D0 + 2 * k, 2)
            A.e("v_pk_mul_f32 %s, %s, v[10:11] op_sel_hi:[1,0]" % (d, d))
        for k in range(4 * t, 4 * t + 4):
            A.e("v_cvt_pk_bf16_f32 %s, %s, %s" % (v(RAW + k), v(D0 + 2 * k), v(D0 + 2 * k + 1)))
        A.lds("ds_write_b128 v12, %s offset:%d" % (v(RAW + 4 * t, 4), t * 4096), "xw")
    st.first_a()
    A.need("xw")
    A.e("s_barrier")
    st.first_b(0)
    stamp()
    h = st.run_phase("gu")
    stamp()
    A.e("s_nop 7")
    for t in range(4):
        for rt in range(4):
            g_, u_ = ACC(t, rt), ACC(t + 4, rt)
            d = V_H + ((t >> 1) * 4 + rt) * 4 + 2 * (t & 1)
            for k in range(2):
                A.e("v_pk_mul_f32 %s, %s, %s" % (v(g_ + 2 * k, 2), v(g_ + 2 * k, 2), v(u_ + 2 * k, 2)))
            for k in range(2):
                A.e("v_cvt_pk_bf16_f32 %s, %s, %s" % (v(d + k), v(g_ + 2 * k), v(g_ + 2 * k + 1)))
    h = st.run_phase("q", b_next_last=False)
    stamp()
    if o.get("pf", 1):
        A.e("s_lshl_b32 s27, %s, 9" % s(S_RB))
        A.e("v_lshrrev_b32 v10, 2, v0")
        A.e("v_lshlrev_b32 v10, 14, v10")
        A.e("v_and_b32 v11, 3, v0")
        A.e("v_lshl_add_u32 v10, v11, 7, v10")
        A.e("s_mov_b32 exec_hi, 0")
        A.vm("buffer_load_dword %s, v10, %s, s27 offen" % (v(V_DUM), s(S_SRDPF, 4)), "pf")
        A.e("s_mov_b64 exec, -1")
    A.e("v_and_b32 v10, 15, v0")
    A.e("v_lshlrev_b32 v10, 4, v10")
    A.e("v_lshrrev_b32 v11, 5, v0")
    A.e("v_lshl_add_u32 v10, v11, 10, v10")
    A.e("v_bfe_u32 v11, v0, 4, 1")
    A.e("v_lshl_add_u32 v10, v11, 3, v10")
    A.e("s_lshl_b32 s27, %s, 14" % s(S_W))
    A.e("v_add_u32 v10, s27, v10")
    A.e("s_mov_b32 s28, %s" % fbits(QSCALE))
    A.lds_drain()
    A.e("s_barrier")
    for t in range(8):
        for rt in range(4):
            r = ACC(t, rt)
            for k in range(2):
                A.e("v_pk_mul_f32 %s, %s, s[28:29] op_sel_hi:[1,0]" % (v(r + 2 * k, 2), v(r + 2 * k, 2)))
            for k in range(2):
                A.e("v_cvt_pk_bf16_f32 %s, %s, %s" % (v(r + k), v(r + 2 * k), v(r + 2 * k + 1)))
            A.lds("ds_write_b64 v10, %s offset:%d" % (v(r, 2), t * 2048 + rt * 256), "qw")
    A.e("s_lshl_b32 s27, %s, 15" % s(S_HH))
    A.e("v_add_u32 v11, s27, %s" % v(V_BA))
    A.lds_drain()
    A.e("s_barrier")
    for rt in range(4):
        for ks in range(8):
            A.e("ds_read_b128 %s, v11 offset:%d" % (a(Q(rt, ks), 4), ks * 4096 + rt * 256))
    A.e("s_lshl_b32 s27, %s, 13" % s(S_W))
    A.e("v_add_u32 v10, s27, %s" % v(V_BA))
    A.lds_drain()
    A.e("s_barrier")
    for p in range(2):
        for rt in range(4):
            A.e("ds_write_b128 v10, %s offset:%d" % (v(V_H + (p * 4 + rt) * 4, 4), p * 4096 + rt * 256))
    A.lds_drain()
    A.e("s_barrier")
    st.first_b(h)
    stamp()
    extra = ["v_accvgpr_write_b32 %s, 0" % a(128 + i) for i in range(128)]
    st.run_phase("d", extra=extra)
    assert not extra
    stamp()
    A.lds_drain()
    A.e("s_barrier")
    at.prologue_dma()
    if o.get("pf", 1):
        A.e("s_lshl_b32 s27, %s, 2" % s(S_RB))
        A.e("s_add_u32 s27, s27, %s" % s(S_W))
        A.e("s_mul_i32 s28, s27, %d" % (28 * 128))
        A.e("v_lshlrev_b32 v11, 7, v0")
        A.e("s_mov_b64 exec, 0xfffffff")
        A.e("buffer_load_dword %s, v11, %s, s28 offen" % (v(V_DUM), s(S_WO, 4)))
        A.e("s_mov_b64 exec, -1")
    npf = 1 if o.get("pf", 1) else 0
    A.e("s_cmp_eq_u32 %s, 7" % s(S_G))
    A.e("s_cbranch_scc1 L_noD")
    store_partial(A, PD_OFF, 36, "L_noD")
    A.vm_q = []
    A.e("s_cmp_eq_u32 %s, 7" % s(S_G))
    A.e("s_cbranch_scc1 L_w0")
    A.e("s_cmp_eq_u32 %s, 3" % s(S_W))
    A.e("s_cbranch_scc1 L_w8")
    A.e("s_waitcnt vmcnt(%d)" % (32 + npf))
    A.e("s_branch L_wdone")
    A.label("L_w8")
    A.e("s_waitcnt vmcnt(%d)" % (24 + npf))
    A.e("s_branch L_wdone")
    A.label("L_w0")
    A.e("s_waitcnt vmcnt(%d)" % (16 + npf))
    A.label("L_wdone")
    A.e("s_barrier")
    stamp()
    at.main(extra=["v_mov_b32 %s, 0" % v(128 + i) for i in range(128)])
    stamp()
    T = 16
    for rt in range(4):
        xreduce(A, "v_add_f32", V_L + rt, T)
        A.e("v_mov_b32 %s, %s" % (v(T + 4 + rt), v(NM(rt))))
    A.e("s_lshl_b32 s27, %s, 15" % s(S_W))
    A.e("v_lshlrev_b32 %s, 4, v0" % v(V_ST))
    A.e("v_add_u32 v6, s27, %s" % v(V_ST))
    A.e("s_xor_b32 s28, s27, 0x10000")
    A.e("v_add_u32 v7, s28, %s" % v(V_ST))
    A.e("s_lshl_b32 s27, %s, 11" % s(S_W))
    A.e("s_add_u32 s27, s27, %d" % ML_BASE)
    A.e("v_add_u32 v8, s27, %s" % v(V_ST))
    A.e("s_xor_b32 s28, s27, 0x1000")
    A.e("v_add_u32 v9, s28, %s" % v(V_ST))
    A.e("s_barrier")
    A.e("ds_write_b128 v8, %s" % v(T + 4, 4))
    A.e("ds_write_b128 v8, %s offset:1024" % v(V_L, 4))
    for i in range(32):
        A.e("ds_write_b128 v6, %s offset:%d" % (a(128 + 4 * i, 4), i * 1024))
    voffsets(A, V_OFF_O, V_OFF_O + 4, 896, False, 8, 24, True)
    A.e("s_mul_i32 %s, %s, %d" % (s(S_RING), s(S_W), NS_O * HS))
    A.e("s_add_u32 %s, %s, %d" % (s(S_RING), s(S_RING), RING_O))
    wa_lane(A, V_WA, 24)
    A.e("v_add_u32 %s, %s, %s" % (v(V_WA), s(S_RING), v(V_WA)))
    A.e("v_and_b32 v24, 15, v0")
    A.e("v_lshrrev_b32 v25, 4, v0")
    A.e("v_lshlrev_b32 %s, 4, v24" % v(V_BA))
    A.e("v_lshl_add_u32 %s, v25, 10, %s" % (v(V_BA), v(V_BA)))
    A.e("s_lshl_b32 s27, %s, 1" % s(S_HH))
    A.e("s_add_u32 s27, s27, %s" % s(S_KH))
    A.e("s_lshl_b32 s27, s27, 14")
    A.e("v_add_u32 v10, s27, %s" % v(V_BA))
    A.lds_drain()
    A.e("s_barrier")
    A.lds("ds_read_b128 %s, v9" % v(T + 8, 4), "ml")
    A.lds("ds_read_b128 %s, v9 offset:1024" % v(T + 12, 4), "ml")
    RX = 36
    for i in range(13):
        A.lds("ds_read_b128 %s, v7 offset:%d" % (v(RX + 4 * i, 4), i * 1024), "r%d" % i)
    A.need("ml")
    for i in range(13, 16):
        A.lds("ds_read_b128 %s, v7 offset:%d" % (v(RX + 4 * i, 4), i * 1024), "r%d" % i)
    for rt in range(4):
        no, npn, lo, lp = T + 4 + rt, T + 8 + rt, V_L + rt, T + 12 + rt
        A.e("v_min_f32 %s, %s, %s" % (v(T), v(no), v(npn)))
        A.e("v_sub_f32 %s, %s, %s" % (v(no), v(T), v(no)))
        A.e("v_sub_f32 %s, %s, %s" % (v(npn), v(T), v(npn)))
        A.e("v_exp_f32 %s, %s" % (v(no), v(no)))
        A.e("v_exp_f32 %s, %s" % (v(npn), v(npn)))
        A.e("v_mul_f32 %s, %s, %s" % (v(lo), v(lo), v(no)))
        A.e("v_fma_f32 %s, %s, %s, %s" % (v(lo), v(lp), v(npn), v(lo)))
        A.e("v_rcp_f32 %s, %s" % (v(lo), v(lo)))
        A.e("s_nop 0")
        A.e("v_mul_f32 %s, %s, %s" % (v(no), v(no), v(lo)))
        A.e("v_mul_f32 %s, %s, %s" % (v(npn), v(npn), v(lo)))

    def bsel(r):
        return v(r & ~1, 2), r & 1

    def combine(i, rx):
        rt, x = i >> 3, i & 7
        r = 128 + 4 * i
        so, so_b = bsel(T + 4 + rt)
        sp, sp_b = bsel(T + 8 + rt)
        for k in range(2):
            A.e("v_pk_mul_f32 %s, %s, %s op_sel:[0,%d] op_sel_hi:[1,%d]" % (v(r + 2 * k, 2), v(r + 2 * k, 2), so, so_b, so_b))
        for k in range(2):
            A.e("v_pk_fma_f32 %s, %s, %s, %s op_sel:[0,%d,0] op_sel_hi:[1,%d,1]" % (
                v(r + 2 * k, 2), v(rx + 2 * k, 2), sp, v(r + 2 * k, 2), sp_b, sp_b))
        d = 128 + 4 * (i & ~1) + 2 * (i & 1)
        for k in range(2):
            A.e("v_cvt_pk_bf16_f32 %s, %s, %s" % (v(d + k), v(r + 2 * k), v(r + 2 * k + 1)))

    for i in range(16):
        A.need("r%d" % i)
        combine(i, RX + 4 * i)
        A.lds("ds_read_b128 %s, v7 offset:%d" % (v(RX + 4 * i, 4), (16 + i) * 1024), "r%d" % (16 + i))
    A.lds_drain()
    A.e("s_barrier")
    OP = Phase("o", 16, S_WO, S_WO, V_OFF_O, V_OFF_O + 4, 896, 0)
    so = Stream(A, [OP], NS_O, 0)
    A.vm_q = []
    so.issue_initial()

    def owrite(i):
        rt, p = i >> 3, (i & 7) >> 1
        A.lds("ds_write_b128 v10, %s offset:%d" % (v(128 + 4 * (i & ~1), 4), p * 4096 + rt * 256), "ow")

    for i in range(1, 16, 2):
        owrite(i)
    for i in range(16, 32):
        combine(i, RX + 4 * (i - 16))
        if i & 1:
            owrite(i)
    so.first_a()
    A.need("ow")
    A.e("s_barrier")
    so.first_b(0)
    stamp()
    so.run_phase("o")
    stamp()
    A.e("s_nop 7")
    store_partial(A, PS_OFF, 36, "L_noS")
    if o.get("stamps"):
        A.e("s_waitcnt vmcnt(0)")
        stamp()
        A.e("s_memrealtime s[98:99]")
        A.e("s_waitcnt lgkmcnt(0)")
        A.e("v_mov_b32 v1, 0")
        for k in range(nst[0]):
            A.e("v_writelane_b32 v1, %s, %d" % (s(S_STAMP + 2 * k), k))
        A.e("v_writelane_b32 v1, s96, 30")
        A.e("v_writelane_b32 v1, s98, 31")
        A.e("s_lshl_b32 s27, s2, 2")
        A.e("s_add_u32 s27, s27, %s" % s(S_W))
        A.e("s_lshl_b32 s27, s27, 8")
        A.e("s_add_u32 s27, s27, 0x4000000")
        A.e("v_lshlrev_b32 v2, 2, v0")
        A.e("buffer_store_dword v1, v2, %s, s27 offen" % s(S_WS, 4))
    A.label("L_done")
    A.e("s_endpgm")
    A.label("L_hot_end")
    at.rare_paths()


def gen_reduce(A, o):
    A.raw(kernel_header(KRED))
    A.e("s_cmp_ge_u32 s2, 448")
    A.e("s_cbranch_scc1 L_rdone")
    A.e("s_load_dwordx2 s[4:5], s[0:1], 0")
    A.e("s_load_dwordx2 s[8:9], s[0:1], 72")
    A.e("s_load_dwordx2 s[12:13], s[0:1], 88")
    A.e("s_mul_hi_u32 s16, s2, %d" % ((2 ** 32 + 13) // 14))
    A.e("s_mul_i32 s17, s16, 14")
    A.e("s_sub_u32 s17, s2, s17")
    A.e("s_mul_i32 s18, s16, %d" % PART)
    A.e("s_lshl_b32 s19, s17, 12")
    A.e("s_add_u32 s18, s18, s19")
    A.e("v_lshlrev_b32 v1, 4, v0")
    A.e("v_lshrrev_b32 v2, 6, v0")
    A.e("v_and_b32 v3, 15, v0")
    A.e("v_lshl_add_u32 v2, v2, 4, v3")
    A.e("v_mul_u32_u24 v2, 896, v2")
    A.e("v_bfe_u32 v3, v0, 4, 2")
    A.e("v_lshl_add_u32 v2, v3, 3, v2")
    A.e("s_mul_i32 s20, s16, %d" % (64 * 896))
    A.e("s_lshl_b32 s21, s17, 6")
    A.e("s_add_u32 s20, s20, s21")
    A.e("s_waitcnt lgkmcnt(0)")
    A.e("s_mov_b32 s6, %d" % (2048 * 896))
    A.e("s_mov_b32 s7, 0x20000")
    A.e("s_mov_b32 s10, %d" % (2048 * 896))
    A.e("s_mov_b32 s11, 0x20000")
    A.e("s_mov_b32 s14, 0x10000000")
    A.e("s_mov_b32 s15, 0x20000")
    R = 8
    A.e("s_add_u32 s19, s18, %d" % PD_OFF)
    for g in range(7):
        A.vm("buffer_load_dwordx4 %s, v1, s[12:15], s19 offen" % v(R + 4 * g, 4), "d%d" % g)
        A.e("s_add_u32 s19, s19, %d" % (32 * PART))
    A.e("s_add_u32 s19, s18, %d" % PS_OFF)
    for g in range(8):
        A.vm("buffer_load_dwordx4 %s, v1, s[12:15], s19 offen" % v(R + 28 + 4 * g, 4), "s%d" % g)
        A.e("s_add_u32 s19, s19, %d" % (32 * PART))
    A.vm("buffer_load_dwordx2 v[4:5], v2, s[4:7], s20 offen", "x")
    A.vm("buffer_load_dwordx2 v[6:7], v2, s[4:7], s20 offen offset:32", "x")
    DA, SA, T = 68, 76, 84

    def accum(acc, src, first):
        for k in range(4):
            if first:
                A.e("v_lshlrev_b32 %s, 16, %s" % (v(acc + 2 * k), v(src + k)))
                A.e("v_and_b32 %s, 0xffff0000, %s" % (v(acc + 2 * k + 1), v(src + k)))
            else:
                A.e("v_lshlrev_b32 %s, 16, %s" % (v(T), v(src + k)))
                A.e("v_and_b32 %s, 0xffff0000, %s" % (v(T + 1), v(src + k)))
                A.e("v_pk_add_f32 %s, %s, %s" % (v(acc + 2 * k, 2), v(acc + 2 * k, 2), v(T, 2)))

    for g in range(7):
        A.vneed("d%d" % g)
        accum(DA, R + 4 * g, g == 0)
    for k in range(4):
        A.e("v_cvt_pk_bf16_f32 %s, %s, %s" % (v(T), v(DA + 2 * k), v(DA + 2 * k + 1)))
        A.e("v_lshlrev_b32 %s, 16, %s" % (v(DA + 2 * k), v(T)))
        A.e("v_and_b32 %s, 0xffff0000, %s" % (v(DA + 2 * k + 1), v(T)))
    for k in range(8):
        A.e("v_mul_f32 %s, %s, %s" % (v(T + k), fbits(-1.4426950408889634), v(DA + k)))
    for k in range(8):
        A.e("v_exp_f32 %s, %s" % (v(T + k), v(T + k)))
    for k in range(8):
        A.e("v_add_f32 %s, 1.0, %s" % (v(T + k), v(T + k)))
    for k in range(8):
        A.e("v_rcp_f32 %s, %s" % (v(T + k), v(T + k)))
    for k in range(8):
        A.e("v_mul_f32 %s, %s, %s" % (v(DA + k), v(DA + k), v(T + k)))
    for k in range(4):
        A.e("v_cvt_pk_bf16_f32 %s, %s, %s" % (v(T), v(DA + 2 * k), v(DA + 2 * k + 1)))
        A.e("v_lshlrev_b32 %s, 16, %s" % (v(DA + 2 * k), v(T)))
        A.e("v_and_b32 %s, 0xffff0000, %s" % (v(DA + 2 * k + 1), v(T)))
    for g in range(8):
        A.vneed("s%d" % g)
        accum(SA, R + 28 + 4 * g, g == 0)
    A.vneed("x")
    for k in range(4):
        A.e("v_cvt_pk_bf16_f32 %s, %s, %s" % (v(T), v(SA + 2 * k), v(SA + 2 * k + 1)))
        A.e("v_lshlrev_b32 %s, 16, %s" % (v(SA + 2 * k), v(T)))
        A.e("v_and_b32 %s, 0xffff0000, %s" % (v(SA + 2 * k + 1), v(T)))
        A.e("v_pk_mul_f32 %s, %s, %s" % (v(SA + 2 * k, 2), v(SA + 2 * k, 2), v(DA + 2 * k, 2)))
        A.e("v_cvt_pk_bf16_f32 %s, %s, %s" % (v(T), v(SA + 2 * k), v(SA + 2 * k + 1)))
        A.e("v_lshlrev_b32 %s, 16, %s" % (v(SA + 2 * k), v(T)))
        A.e("v_and_b32 %s, 0xffff0000, %s" % (v(SA + 2 * k + 1), v(T)))
        A.e("v_lshlrev_b32 %s, 16, %s" % (v(T + 2), v(4 + k)))
        A.e("v_and_b32 %s, 0xffff0000, %s" % (v(T + 3), v(4 + k)))
        A.e("v_pk_add_f32 %s, %s, %s" % (v(SA + 2 * k, 2), v(SA + 2 * k, 2), v(T + 2, 2)))
        A.e("v_cvt_pk_bf16_f32 %s, %s, %s" % (v(4 + k), v(SA + 2 * k), v(SA + 2 * k + 1)))
    A.e("buffer_store_dwordx2 v[4:5], v2, s[8:11], s20 offen")
    A.e("buffer_store_dwordx2 v[6:7], v2, s[8:11], s20 offen offset:32")
    A.label("L_rdone")
    A.e("s_endpgm")


HEADER = open("cdna_kernels/%s.s.ref" % BASE).read().split("; Override launch")[0]


def gen(o):
    A = Asm()
    A.raw(HEADER.rstrip())
    A.raw("; @launch kernel=%s grid=(256,1,1) block=(256,1,1) lds=163840" % KMAIN)
    if not o.get("nored"):
        A.raw("; @launch kernel=%s grid=(448,1,1) block=(256,1,1) lds=0" % KRED)
    A.raw('.amdgcn_target "amdgcn-amd-amdhsa--gfx950"')
    A.raw(".text")
    gen_main(A, o)
    A.vm_q = []
    A.lds_q = []
    gen_reduce(A, o)
    A.raw('.section .rodata,"a"')
    A.raw(".p2align 6")
    A.raw(kernel_desc(KMAIN, 512, 256))
    A.raw(".p2align 6")
    A.raw(kernel_desc(KRED, 96, 96, sgpr=32))
    return A.text()


if __name__ == "__main__":
    o = json.loads(sys.argv[2]) if len(sys.argv) > 2 else {}
    open(sys.argv[1], "w").write(gen(o))
```

```python
from asmlib import Asm, v, a, s

CH = 1056
TILE = 16 * CH
SLOT = 2 * TILE
VBASE = 2 * SLOT
LDS_ATT_END = 4 * SLOT

V_KA, V_VA, V_KD, V_VD = 1, 2, 3, 4
V_MX = 5
V_T = 6
V_L = 12
V_F = 16
V_VA1, V_PF, V_DUM = 32, 33, 34
V_NM = 48
V_SP = 64
V_OK = 128

S_SRDK, S_SRDV = 4, 8
S_KO0, S_KO1, S_VO = 21, 22, 23
S_KB, S_VB = 24, 25
S_CNT = 26
S_SRDPF, S_PFO = 56, 62
S_16K = 63
S_M0 = 64
THRESH = "0x41c00000"
MF = "v_mfma_f32_16x16x32_bf16"


def NM(rt):
    return V_NM + 4 * rt


def SP(p, rt):
    return V_SP + 32 * p + 8 * rt


def Q(rt, ks):
    return 32 * rt + 4 * ks


def O(rt, dbl):
    r = 128 + (rt * 8 + (dbl & 7)) * 4
    return v(r, 4) if dbl < 8 else a(r, 4)


class Soft:
    def __init__(self, p, on=True):
        self.exps = []
        self.ready = []
        self.later = []
        if on:
            for rt in range(4):
                b = SP(p, rt)
                for i in range(8):
                    post = ["v_add_f32 %s, %s, %s" % (v(V_L + rt), v(V_L + rt), v(b + i))]
                    if i & 1:
                        post.append("v_cvt_pk_bf16_f32 %s, %s, %s" % (v(b + (i >> 1)), v(b + i - 1), v(b + i)))
                    self.exps.append(("v_exp_f32 %s, %s" % (v(b + i), v(b + i)), post))
        self.done = 0

    def gap(self, A, free, want_exp):
        self.ready += self.later
        self.later = []
        if free >= 2 and self.exps and want_exp and len(self.ready) <= 3:
            t, post = self.exps.pop(0)
            A.e(t)
            self.later = post
            self.done += 1
            return
        while free > 0 and self.ready:
            A.e(self.ready.pop(0))
            free -= 1

    def empty(self):
        return not (self.exps or self.ready or self.later)

    def flush(self, A):
        while not self.empty():
            had = bool(self.later)
            if had:
                A.e("s_nop 0")
            self.gap(A, 2, True)


class Fill:
    def __init__(self, items, spacing=4):
        self.q = list(items)
        self.spacing = spacing
        self.since = 99
        self.armed = False

    def gap(self, A, free):
        self.since += 1
        ns = 0
        while self.q:
            it = self.q[0]
            if it[0] == "s":
                if ns >= 2:
                    break
                A.e(it[1])
                ns += 1
            elif it[0] == "d":
                if not self.armed:
                    if self.since + 1 < self.spacing:
                        free = self._bypass(A, free)
                        break
                    A.e(it[1])
                    self.armed = True
                    free = self._bypass(A, free)
                    break
                if free <= 0:
                    break
                A.e(it[2])
                self.armed = False
                self.since = 0
                free -= 1
            elif it[0] in ("m", "l"):
                if free <= 0:
                    break
                if self.since < self.spacing:
                    free = self._bypass(A, free)
                    break
                if it[0] == "m":
                    A.e(it[1])
                else:
                    A.lds(it[1], it[2])
                self.since = 0
                free -= 1
            else:
                if free <= 0:
                    break
                A.e(it[1])
                free -= 1
            self.q.pop(0)
        return free

    def _bypass(self, A, free):
        i = 1
        while free > 0 and i < len(self.q):
            if self.q[i][0] == "v":
                A.e(self.q.pop(i)[1])
                free -= 1
            elif self.q[i][0] == "s" and not self.q[i][1].startswith("s_add_u32 s2"):
                break
            else:
                i += 1
        return free

    def flush(self, A):
        while self.q:
            it = self.q.pop(0)
            if it[0] == "d":
                if not self.armed:
                    A.e(it[1])
                    A.e("s_nop 0")
                self.armed = False
                A.e(it[2])
            elif it[0] == "l":
                A.lds(it[1], it[2])
            else:
                A.e(it[1])


class Attn:
    def __init__(self, A, opt=None):
        self.A = A
        self.o = dict(nbuf=4, dma=True, barrier=True, softmax=True, reads=True,
                      dma_start=0, dma_step=4, aux="", chk=30, nexp_b=12, max0=4, bar_back=2, waitgrp=1, m0pre=True)
        self.o.update(opt or {})
        self.sm = None
        self.dbx = 0

    def F(self, f):
        return V_F + 4 * (f % self.o["nbuf"])

    def read_ops(self, f, kslot, vslot):
        if not self.o["reads"]:
            return []
        r = self.F(f)
        if f < 16:
            ks, kt = f >> 1, f & 1
            return [("ds_read_b128 %s, %s offset:%d" % (v(r, 4), v(V_KA), kslot * SLOT + kt * 8 * CH + 64 * ks), "f%d" % f)]
        db = (f - 16) ^ self.dbx
        base = vslot * SLOT + ((db >> 2) & 1) * 4 * CH + (db & 3) * 32
        return [("ds_read_b64_tr_b16 %s, %s offset:%d" % (v(r + 2 * u, 2), v(V_VA if db < 8 else V_VA1), base + u * 512), "f%d" % f)
                for u in range(2)]

    def dma_k(self, tt, slot):
        return [self.m0_op(0, slot, tt),
                "buffer_load_dwordx4 %s, %s, %s offen offset:%d %s lds" % (
                    v(V_KD), s(S_SRDK, 4), s(S_KO0 if tt < 4 else S_KO1), 1024 * (tt & 3), self.o["aux"])]

    def dma_v(self, qq, slot):
        cbl, c = qq >> 2, qq & 3
        imm = c * 1024 + cbl * 128
        return [self.m0_op(1, slot, qq),
                "buffer_load_dwordx4 %s, %s, %s offen offset:%d %s lds" % (
                    v(V_VD), s(S_SRDV, 4), s(S_VO), imm, self.o["aux"])]

    @staticmethod
    def m0_const(isv, slot, k):
        if isv:
            return slot * SLOT + k * CH - ((k & 3) * 1024 + (k >> 2) * 128)
        return slot * SLOT + k * CH - 1024 * (k & 3)

    def m0_op(self, isv, slot, k):
        if self.o["m0pre"]:
            return "s_mov_b32 m0, %s" % s(S_M0 + isv * 16 + slot * 8 + k)
        return "s_add_u32 m0, %s, %d" % (s(S_VB if isv else S_KB), self.m0_const(isv, slot, k))

    def m0_setup(self):
        if not self.o["m0pre"]:
            return []
        return ["s_add_u32 %s, %s, %d" % (s(S_M0 + isv * 16 + slot * 8 + k), s(S_VB if isv else S_KB), self.m0_const(isv, slot, k))
                for isv in range(2) for slot in range(2) for k in range(8)]

    def emit_dma_block(self, pairs):
        for m0, ld in pairs:
            self.A.e(m0)
            self.A.e("s_nop 0")
            self.A.e(ld)

    def adv_k(self):
        return ["s_add_u32 %s, %s, %s" % (s(S_KO0), s(S_KO0), s(S_16K)),
                "s_add_u32 %s, %s, %s" % (s(S_KO1), s(S_KO1), s(S_16K))]

    def adv_v(self):
        return ["s_add_u32 %s, %s, %s" % (s(S_VO), s(S_VO), s(S_16K))]

    def max_ops(self, p):
        regs = [SP(p, rt) + 4 * kt + i for kt in range(2) for rt in range(4) for i in range(4)]
        ops = ["v_max3_f32 %s, %s, %s, %s" % (v(V_MX), v(regs[0]), v(regs[1]), v(regs[2]))]
        i = 3
        while i < 32:
            r2 = regs[min(i + 1, 31)]
            ops.append("v_max3_f32 %s, %s, %s, %s" % (v(V_MX), v(V_MX), v(regs[i]), v(r2)))
            i += 2
        return ops

    def qk_mfma(self, i, p, first_c):
        f, rt = i >> 2, i & 3
        ks, kt = f >> 1, f & 1
        d = v(SP(p, rt) + 4 * kt, 4)
        c = d if ks else first_c(rt)
        return "%s %s, %s, %s, %s" % (MF, d, v(self.F(f), 4), a(Q(rt, ks), 4), c)

    def pv_mfma(self, i, p, zero=False):
        db, rt = i >> 2, i & 3
        o = O(rt, db ^ self.dbx)
        return "%s %s, %s, %s, %s" % (MF, o, v(self.F(16 + db), 4), v(SP(p, rt), 4), "0" if zero else o)

    def _need(self, f):
        wg = self.o["waitgrp"]
        if f % wg == 0:
            self.A.need("f%d" % (f + wg - 1))

    def phase_a(self, j, qk=True, first=False, vreads=True, extra=None, vmw=1):
        A, nb = self.A, self.o["nbuf"]
        p, pn = j & 1, (j + 1) & 1
        sm = self.sm
        first_c = (lambda rt: "0") if first else (lambda rt: v(NM(rt), 4))
        bar_at = 63 - 4 * self.o["bar_back"]
        nxt = nb
        pend = []
        nexp = len(sm.exps) if sm else 0
        done0 = sm.done if sm else 0
        last_exp_gap = 52
        for i in range(64):
            if qk:
                if not (i & 3):
                    self._need(i >> 2)
                A.e(self.qk_mfma(i, pn, first_c))
            if i == bar_at:
                assert not pend
                A.lds_drain("vmcnt(%d)" % (vmw(extra) if callable(vmw) else vmw))
                if self.o["barrier"]:
                    A.e("s_barrier")
            if (i & 3) == 3:
                while nxt <= (i >> 2) + nb and (nxt < 16 or (i >= bar_at and vreads)):
                    if nxt >= 16 or qk:
                        pend += self.read_ops(nxt, pn, p)
                    nxt += 1
            free = 2
            k = min(len(pend), 2 if len(pend) > 2 else 1)
            if i == 63:
                k = len(pend)
            for t, tag in pend[:k]:
                A.lds(t, tag)
                free -= 1
            pend = pend[k:]
            if extra and not sm:
                extra.gap(A, free)
            if sm:
                want = (sm.done - done0) * last_exp_gap <= i * nexp
                if qk:
                    if extra:
                        n0 = len(A.lines)
                        if not (want and free >= 2 and sm.exps and len(sm.ready + sm.later) <= 3):
                            free = extra.gap(A, min(free, 1)) + free - min(free, 1)
                        else:
                            extra.gap(A, 0)
                    sm.gap(A, free, want)
                elif not sm.empty():
                    if sm.later:
                        A.e("s_nop 0")
                    sm.gap(A, 2, True)
        if sm:
            assert sm.empty(), (len(sm.exps), sm.ready, sm.later)
        self.sm = None
        self.nxt = nxt

    def phase_b(self, j, check=True, dmas=(), kreads=True, post=(), rare=None, pf=None, zero=False, extra=None, extra_from=0):
        A, nb = self.A, self.o["nbuf"]
        p, pn = j & 1, (j + 1) & 1
        check = check and self.o["softmax"]
        mo = self.max_ops(pn) if check else []
        chk = self.o["chk"]
        dm0 = {}
        dld = {}
        g = self.o["dma_start"]
        for m0, ld in dmas:
            dm0[g] = m0
            dld[g + 1] = ld
            g += self.o["dma_step"]
        assert g - self.o["dma_step"] + 1 <= 63
        post = list(post)
        nxt = self.nxt
        pend = []
        sm = None
        nmax = len(mo)
        for i in range(64):
            if not (i & 3):
                self._need(16 + (i >> 2))
            A.e(self.pv_mfma(i, p, zero))
            if i == chk and check:
                A.e("s_cbranch_vccnz %s" % rare[0])
                A.label(rare[1])
                sm = Soft(pn)
            if (i & 3) == 3:
                while nxt <= 16 + (i >> 2) + nb and (nxt < 32 or kreads):
                    pend += self.read_ops(nxt % 32, p, p)
                    nxt += 1
            free = 2
            if i == 62 and pf:
                A.e(pf)
                free -= 1
            if i in dld:
                A.e(dld[i])
                free -= 1
            if i in dm0:
                A.e(dm0[i])
            k = min(len(pend), 1, free)
            if i == 63:
                k = len(pend)
            for t, tag in pend[:k]:
                A.lds(t, tag)
                free -= 1
            pend = pend[k:]
            if mo and i >= self.o["max0"]:
                while free > 0 and mo and (nmax - len(mo)) * (chk - 3 - self.o["max0"]) <= (i - self.o["max0"]) * nmax:
                    A.e(mo.pop(0))
                    free -= 1
                    break
            if check and i == chk - 1:
                assert not mo, mo
                A.e("v_cmp_lt_f32 vcc, %s, %s" % (THRESH, v(V_MX)))
            if sm:
                want = sm.done * (63 - chk) <= (i - chk) * self.o["nexp_b"] and sm.done < self.o["nexp_b"]
                sm.gap(A, free, want)
            if dmas:
                last = lambda k: self.o["dma_start"] + k * self.o["dma_step"] + 2
                if i == last(7):
                    A.e(self.adv_v()[0])
                if i == last(11):
                    A.e(self.adv_k()[0])
                if i == last(15):
                    A.e(self.adv_k()[1])
            if extra and i >= extra_from:
                extra.gap(A, free)
            if post and i == 63:
                if i == 63:
                    for t in post:
                        if t[0] == "@":
                            A.label(t[1:])
                        else:
                            A.e(t)
                    post = []
                else:
                    A.e(post.pop(0))
        self.sm = sm

    def rowmax(self, p, rt, dst, tmp):
        A = self.A
        b = SP(p, rt)
        A.e("v_max3_f32 %s, %s, %s, %s" % (v(dst), v(b), v(b + 1), v(b + 2)))
        A.e("v_max3_f32 %s, %s, %s, %s" % (v(dst), v(dst), v(b + 3), v(b + 4)))
        A.e("v_max3_f32 %s, %s, %s, %s" % (v(dst), v(dst), v(b + 5), v(b + 6)))
        A.e("v_max_f32 %s, %s, %s" % (v(dst), v(dst), v(b + 7)))
        for sw in ("v_permlane16_swap_b32", "v_permlane32_swap_b32"):
            A.e("v_mov_b32 %s, %s" % (v(tmp), v(dst)))
            A.e("s_nop 1")
            A.e("%s %s, %s" % (sw, v(tmp), v(dst)))
            A.e("s_nop 1")
            A.e("v_max_f32 %s, %s, %s" % (v(dst), v(dst), v(tmp)))

    def init_max(self, p, ex):
        A = self.A
        T, U = 36, 40
        ops = ["s_nop 3"]
        for k in range(4):
            for rt in range(4):
                b = SP(p, rt)
                if k == 0:
                    ops.append("v_max3_f32 %s, %s, %s, %s" % (v(T + rt), v(b), v(b + 1), v(b + 2)))
                elif k < 3:
                    ops.append("v_max3_f32 %s, %s, %s, %s" % (v(T + rt), v(T + rt), v(b + 2 * k + 1), v(b + 2 * k + 2)))
                else:
                    ops.append("v_max_f32 %s, %s, %s" % (v(T + rt), v(T + rt), v(b + 7)))
        for sw in ("v_permlane16_swap_b32", "v_permlane32_swap_b32"):
            ops += ["v_mov_b32 %s, %s" % (v(U + rt), v(T + rt)) for rt in range(4)]
            ops += ["s_nop 0"]
            ops += ["%s %s, %s" % (sw, v(U + rt), v(T + rt)) for rt in range(4)]
            ops += ["v_max_f32 %s, %s, %s" % (v(T + rt), v(T + rt), v(U + rt)) for rt in range(4)]
        for rt in range(4):
            b = SP(p, rt)
            for i in range(0, 8, 2):
                ops.append("v_pk_add_f32 %s, %s, %s op_sel:[0,%d] op_sel_hi:[1,%d] neg_lo:[0,1] neg_hi:[0,1]" % (
                    v(b + i, 2), v(b + i, 2), v((T + rt) & ~1, 2), rt & 1, rt & 1))
            for i in range(4):
                ops.append("v_sub_f32 %s, 0, %s" % (v(NM(rt) + i), v(T + rt)))
            ops.append("v_mov_b32 %s, 0" % v(V_L + rt))
        for k, t in enumerate(ops):
            A.e(t)
            if k % 4 == 3:
                ex.gap(A, 1)
        ex.flush(A)
        self.sm = Soft(p, self.o["softmax"])

    def rare_path(self, p, name, back):
        A = self.A
        A.label(name)
        A.e("s_nop 7")
        T = V_T
        for rt in range(4):
            self.rowmax(p, rt, T, T + 1)
            A.e("v_max_f32 %s, 0, %s" % (v(T), v(T)))
            A.e("v_ceil_f32 %s, %s" % (v(T), v(T)))
            A.e("v_cvt_i32_f32 %s, -%s" % (v(T + 1), v(T)))
            A.e("v_ldexp_f32 %s, 1.0, %s" % (v(T + 1), v(T + 1)))
            b = SP(p, rt)
            for i in range(4):
                A.e("v_sub_f32 %s, %s, %s" % (v(NM(rt) + i), v(NM(rt) + i), v(T)))
            for i in range(8):
                A.e("v_sub_f32 %s, %s, %s" % (v(b + i), v(b + i), v(T)))
            A.e("v_mul_f32 %s, %s, %s" % (v(V_L + rt), v(V_L + rt), v(T + 1)))
            pb = SP(p ^ 1, rt)
            for i in range(4):
                A.e("v_lshlrev_b32 %s, 16, %s" % (v(T + 2), v(pb + i)))
                A.e("v_and_b32 %s, 0xffff0000, %s" % (v(T + 3), v(pb + i)))
                A.e("v_mul_f32 %s, %s, %s" % (v(T + 2), v(T + 2), v(T + 1)))
                A.e("v_mul_f32 %s, %s, %s" % (v(T + 3), v(T + 3), v(T + 1)))
                A.e("v_cvt_pk_bf16_f32 %s, %s, %s" % (v(pb + i), v(T + 2), v(T + 3)))
            for i in range(32):
                r = 128 + rt * 32 + i
                A.e("v_mul_f32 %s, %s, %s" % (v(r), v(r), v(T + 1)))
            for i in range(0, 32, 4):
                r = 128 + rt * 32 + i
                for k in range(4):
                    A.e("v_accvgpr_read_b32 %s, %s" % (v(T + 2 + k), a(r + k)))
                for k in range(4):
                    A.e("v_mul_f32 %s, %s, %s" % (v(T + 2 + k), v(T + 2 + k), v(T + 1)))
                for k in range(4):
                    A.e("v_accvgpr_write_b32 %s, %s" % (a(r + k), v(T + 2 + k)))
        A.e("s_nop 1")
        A.e("s_branch %s" % back)

    def dma_list(self, j, k=True, vv=True):
        if not self.o["dma"]:
            return []
        lst = []
        if vv:
            lst += [self.dma_v(q, (j + 1) & 1) for q in range(8)]
        if k:
            lst += [self.dma_k(t, (j + 1) & 1) for t in range(8)]
        return lst

    def setup_addresses(self, s_hh, s_kh, vlane, t0):
        A = self.A
        t1, t2, t3 = t0 + 1, t0 + 2, t0 + 3
        A.e("v_bfe_u32 %s, %s, 1, 3" % (v(t1), v(vlane)))
        A.e("v_mul_u32_u24 %s, %d, %s" % (v(V_KA), CH, v(t1)))
        A.e("v_and_b32 %s, 1, %s" % (v(t1), v(vlane)))
        A.e("v_lshrrev_b32 %s, 4, %s" % (v(t2), v(vlane)))
        A.e("v_xor_b32 %s, %s, %s" % (v(t3), v(t1), v(t2)))
        A.e("v_lshlrev_b32 %s, 4, %s" % (v(t3), v(t3)))
        A.e("v_lshl_add_u32 %s, %s, 9, %s" % (v(t3), v(t1), v(t3)))
        A.e("v_add_u32 %s, %s, %s" % (v(V_KA), v(V_KA), v(t3)))
        A.e("s_mul_i32 s27, %s, %d" % (s(s_kh), TILE))
        A.e("v_add_u32 %s, s27, %s" % (v(V_KA), v(V_KA)))
        A.e("v_and_b32 %s, 31, %s" % (v(t0), v(vlane)))
        A.e("v_lshrrev_b32 %s, 5, %s" % (v(t2), v(vlane)))
        A.e("v_xor_b32 %s, %s, %s" % (v(t3), v(t0), v(t2)))
        A.e("v_lshlrev_b32 %s, 4, %s" % (v(t3), v(t3)))
        A.e("v_lshl_add_u32 %s, %s, 9, %s" % (v(t3), v(t2), v(t3)))
        A.e("s_lshl_b32 s28, %s, 13" % s(s_hh))
        A.e("v_add_u32 %s, s28, %s" % (v(V_KD), v(t3)))
        A.e("s_mul_i32 s29, %s, %d" % (s(s_hh), 8 * CH))
        A.e("s_add_u32 %s, s27, s29" % s(S_KB))
        A.e("s_add_u32 %s, %s, %d" % (s(S_VB), s(S_KB), VBASE))
        A.e("v_bfe_u32 %s, %s, 3, 2" % (v(t0), v(vlane)))
        A.e("v_mul_u32_u24 %s, %d, %s" % (v(V_VA), CH, v(t0)))
        A.e("v_bfe_u32 %s, %s, 2, 1" % (v(t0), v(vlane)))
        A.e("v_lshl_add_u32 %s, %s, 1, %s" % (v(t0), v(t2), v(t0)))
        A.e("v_lshl_add_u32 %s, %s, 7, %s" % (v(V_VA), v(t0), v(V_VA)))
        A.e("v_and_b32 %s, 3, %s" % (v(t0), v(vlane)))
        A.e("v_lshl_add_u32 %s, %s, 3, %s" % (v(V_VA), v(t0), v(V_VA)))
        A.e("s_add_u32 s27, s27, %d" % VBASE)
        A.e("s_mul_i32 s29, %s, %d" % (s(s_kh), 8 * CH))
        A.e("s_sub_u32 s28, s27, s29")
        A.e("s_add_u32 s28, s28, %d" % (8 * CH))
        A.e("s_add_u32 s27, s27, s29")
        A.e("v_add_u32 %s, s28, %s" % (v(V_VA1), v(V_VA)))
        A.e("v_add_u32 %s, s27, %s" % (v(V_VA), v(V_VA)))
        A.e("v_lshrrev_b32 %s, 4, %s" % (v(t0), v(vlane)))
        A.e("v_lshlrev_b32 %s, 3, %s" % (v(t0), v(t0)))
        A.e("v_bfe_u32 %s, %s, 3, 1" % (v(t1), v(vlane)))
        A.e("v_add_u32 %s, %s, %s" % (v(t0), v(t0), v(t1)))
        A.e("v_and_b32 %s, 7, %s" % (v(t1), v(vlane)))
        A.e("v_lshlrev_b32 %s, 4, %s" % (v(t1), v(t1)))
        A.e("v_lshl_add_u32 %s, %s, 9, %s" % (v(t0), v(t0), v(t1)))
        A.e("s_lshl_b32 s28, %s, 8" % s(s_hh))
        A.e("v_add_u32 %s, s28, %s" % (v(V_VD), v(t0)))

    def offsets_init(self):
        return ["s_mov_b32 %s, 0" % s(S_KO0), "s_mov_b32 %s, 4096" % s(S_KO1), "s_mov_b32 %s, 0" % s(S_VO), "s_mov_b32 %s, 16384" % s(S_16K)]

    def fill_k(self, slot):
        return [("d",) + tuple(self.dma_k(t, slot)) for t in range(8)] + [("s", t) for t in self.adv_k()]

    def fill_v(self, slot):
        return [("d",) + tuple(self.dma_v(t, slot)) for t in range(8)] + [("s", t) for t in self.adv_v()]

    def pf_op(self):
        if not self.o.get("roll", True):
            return None
        return "buffer_load_dword %s, %s, %s, %s offen" % (v(V_DUM), v(V_PF), s(S_SRDPF, 4), s(S_PFO))

    def main(self, pre_v, stores, last_fill, signal=None):
        A, nb = self.A, self.o["nbuf"]
        for f in range(nb):
            for t, tag in self.read_ops(f, 0, 0):
                A.lds(t, tag)
        ex = Fill(self.fill_k(1) + self.fill_v(0) + pre_v, spacing=3)

        def w0(e):
            assert not any(it[0] == "d" for it in e.q), e.q
            return 0
        self.phase_a(-1, first=True, vreads=False, extra=ex, vmw=w0)
        ex.flush(A)
        for f in range(nb):
            for t, tag in self.read_ops(f, 1, 0):
                A.lds(t, tag)
        self.init_max(0, Fill(self.fill_k(0), spacing=1))
        sm = self.sm
        ref = self._steady_state()
        while sm.done < ref[0] or len(sm.ready) + len(sm.later) > ref[1]:
            if sm.later:
                A.e("s_nop 0")
            if sm.done < ref[0]:
                sm.gap(A, 2, True)
            else:
                sm.gap(A, 1, False)
        ex = Fill(stores, spacing=3)
        nst = len([1 for it in stores if it[0] == "m"])
        self.phase_a(0, extra=ex, vmw=lambda e: nst - len([1 for it in e.q if it[0] == "m"]))
        ex.flush(A)
        post = ["s_add_u32 %s, %s, %s" % (s(S_PFO), s(S_PFO), s(S_16K))]
        self.phase_b(0, dmas=self.dma_list(0), post=post + ["s_mov_b32 %s, 0" % s(S_CNT)],
                     rare=("L_rare0", "L_back0"), pf=self.pf_op(), zero=True)
        state = (self.sm.done, [t.split()[0] for t in self.sm.ready + self.sm.later])
        entry_q = list(A.lds_q)
        A.raw(".p2align 3")
        A.label("L_att_loop")
        for jj in (1, 2):
            self.phase_a(jj)
            pp = list(post)
            if jj == 1 and signal:
                pp += ["s_cmp_eq_u32 %s, 0" % s(S_CNT), "s_cbranch_scc1 %s" % signal[0], "@" + signal[1]]
            if jj == 2:
                pp += ["s_add_u32 %s, %s, 1" % (s(S_CNT), s(S_CNT)), "s_cmp_lt_u32 %s, 15" % s(S_CNT)]
            self.phase_b(jj, dmas=self.dma_list(jj), post=pp, rare=("L_rare%d" % jj, "L_back%d" % jj), pf=self.pf_op())
            assert A.lds_q == entry_q, (A.lds_q, entry_q)
            assert (self.sm.done, [t.split()[0] for t in self.sm.ready + self.sm.later]) == state
        A.e("s_cbranch_scc1 L_att_loop")
        self.dbx = 8
        self.phase_a(31, qk=False, vmw=0)
        A.e("s_nop 1")
        ex = last_fill()
        self.phase_b(31, check=False, kreads=False, extra=ex)
        return ex

    def _steady_state(self):
        if not self.o["softmax"]:
            return (0, 0)
        tmp = Attn(Asm(), self.o)
        tmp.nxt = 16 + self.o["nbuf"]
        tmp.phase_b(1, dmas=tmp.dma_list(1), rare=("x", "y"), pf=tmp.pf_op())
        return (tmp.sm.done, len(tmp.sm.ready) + len(tmp.sm.later))

    def rare_paths(self):
        if not self.o["softmax"]:
            return
        self.rare_path(1, "L_rare0", "L_back0")
        self.rare_path(0, "L_rare1", "L_back1")
        self.rare_path(1, "L_rare2", "L_back2")
```

```python
import sys, json
from asmlib import *
from attn16 import *

BASE = "recurrent_scan__gqa_block_cached__glu_gated_bilinear__prompt"
KMAIN = BASE + "_kernel"
KRED = "final_reduce_kernel"

HS = 4 * CH
RING_P, NS_P = 57344, 6
RING_O, NS_O = 65536, 5
ML_BASE = 98304
SIGMA = 5

V_FA = 16
V_FB = 36
V_H = 68
V_OFF_GU = 100
V_OFF_Q = 104
V_OFF_D = 112
V_WA, V_BA = 120, 121
V_ST = 122
V_OFF_O = 104
S_W, S_HH, S_KH, S_G, S_RB = 16, 17, 18, 19, 20
S_WS = 12
S_X, S_WG, S_WU, S_WQ, S_WD, S_WO = 32, 36, 40, 44, 48, 52
S_RING, S_SO = 60, 61
S_WSD = 32
V_ST2 = 123
S_STAMP = 64
PD_OFF, PS_OFF = 0, 0x1000000
PART = 56 * 1024
QSCALE = 1.4426950408889634 / 16.0


def fbits(x):
    import struct
    return "0x%08x" % struct.unpack("<I", struct.pack("<f", x))[0]


def ACC(t, rt):
    return 128 + (t * 4 + rt) * 4


class Phase:
    def __init__(self, name, nk, srd0, srd1, off0, off1, stride, act):
        self.name, self.nk, self.srd, self.off, self.stride, self.act = name, nk, (srd0, srd1), (off0, off1), stride, act


class Stream:
    def __init__(self, A, phases, ns, sigma):
        self.A, self.ns, self.sigma = A, ns, sigma
        self.hs = []
        gk = 0
        for ph in phases:
            for ks in range(ph.nk):
                for cb in range(2):
                    self.hs.append((ph, ks, cb, gk))
                gk += 1
        self.lead = ns - 1
        self.pend = []

    def slot(self, h):
        return ((h + self.sigma) % self.ns) * HS

    def dma_ops(self, h):
        if h >= len(self.hs):
            return []
        ph, ks, cb, gk = self.hs[h]
        out = []
        for c in range(4):
            pre = []
            if c == 0 and cb == 0:
                pre.append("s_mov_b32 %s, %d" % (s(S_SO), ks * 32 * ph.stride))
            pre.append("s_add_u32 m0, %s, %d" % (s(S_RING), self.slot(h) + c * CH))
            ld = "buffer_load_dwordx4 %s, %s, %s offen lds" % (v(ph.off[cb] + c), s(ph.srd[cb], 4), s(S_SO))
            out.append((pre, ld, "w%d" % h))
        return out

    def issue_initial(self):
        for h in range(self.lead):
            for pre, ld, tag in self.dma_ops(h):
                for t in pre:
                    self.A.e(t)
                self.A.e("s_nop 0")
                self.A.vm(ld, tag)

    def a_reads(self, h, x):
        if h >= len(self.hs):
            return []
        return [("ds_read_b64_tr_b16 %s, %s offset:%d" % (v(V_FA + 4 * x + 2 * u, 2), v(V_WA), self.slot(h) + x * 32 + u * 512),
                 "a%d_%d" % (h, x)) for u in range(2)]

    def b_reads(self, ph, ks, gk):
        return [("ds_read_b128 %s, %s offset:%d" % (v(V_FB + 16 * (gk & 1) + 4 * rt, 4), v(V_BA), ph.act + ks * 4096 + rt * 256),
                 "b%d" % gk) for rt in range(4)]

    def first_a(self):
        A = self.A
        A.vneed("w0")
        for x in range(4):
            for t, tag in self.a_reads(0, x):
                A.lds(t, tag)

    def first_b(self, h):
        ph, ks, cb, gk = self.hs[h]
        for t, tag in self.b_reads(ph, ks, gk):
            self.A.lds(t, tag)

    def period(self, h, extra=None, b_next=True):
        A = self.A
        ph, ks, cb, gk = self.hs[h]
        dm = self.dma_ops(h + self.lead)
        br = []
        if cb == 1 and b_next and h + 1 < len(self.hs):
            nph, nks, _, ngk = self.hs[h + 1]
            br = self.b_reads(nph, nks, ngk)
        for i in range(16):
            x, rt = i >> 2, i & 3
            if rt == 0:
                if x == 0 and cb == 0:
                    A.need("b%d" % gk)
                A.need("a%d_%d" % (h, x))
            acc = v(ACC(4 * cb + x, rt), 4)
            A.e("%s %s, %s, %s, %s" % (MF, acc, v(V_FA + 4 * x, 4), v(V_FB + 16 * (gk & 1) + 4 * rt, 4), acc if ks else "0"))
            free = 2
            if rt == 3:
                if x == 0:
                    A.vneed("w%d" % (h + 1))
                self.pend += self.a_reads(h + 1, x)
            if self.pend:
                t, tag = self.pend.pop(0)
                A.lds(t, tag)
                free -= 1
            if rt == 0 and dm:
                for t in dm[x][0]:
                    A.e(t)
            if rt == 1 and dm:
                A.vm(dm[x][1], dm[x][2])
                free -= 1
            if rt == 2 and br:
                t, tag = br[x]
                A.lds(t, tag)
                free -= 1
            if extra and free > 0:
                A.e(extra.pop(0))

    def flush_pend(self):
        for t, tag in self.pend:
            self.A.lds(t, tag)
        self.pend = []

    def run_phase(self, name, extra=None, b_next_last=True):
        idx = [h for h, e in enumerate(self.hs) if e[0].name == name]
        for h in idx:
            self.period(h, extra, b_next=(b_next_last or h != idx[-1]))
        self.flush_pend()
        return idx[-1] + 1


def make_srd(A, sreg, karg_reg, size, off_sreg=None, zero_if_g7=False):
    if off_sreg is not None:
        A.e("s_add_u32 %s, %s, %s" % (s(sreg), s(sreg), s(off_sreg)))
        A.e("s_addc_u32 %s, %s, 0" % (s(sreg + 1), s(sreg + 1)))
        A.e("s_sub_u32 %s, %d, %s" % (s(sreg + 2), size, s(off_sreg)))
    else:
        A.e("s_mov_b32 %s, %d" % (s(sreg + 2), size))
    if zero_if_g7:
        A.e("s_cmp_eq_u32 %s, 7" % s(S_G))
        A.e("s_cselect_b32 %s, 0, %s" % (s(sreg + 2), s(sreg + 2)))
    A.e("s_mov_b32 %s, 0x20000" % s(sreg + 3))


def voffsets(A, dst0, dst1, stride, natural, colshift, t0, oob_w3):
    t1, t2 = t0 + 1, t0 + 2
    A.e("v_bfe_u32 %s, v0, 3, 1" % v(t0))
    A.e("v_bfe_u32 %s, v0, 4, 1" % v(t1))
    A.e("v_lshl_add_u32 %s, %s, %d, %s" % (v(t0), v(t1), 4 if natural else 3, v(t0)))
    A.e("v_lshrrev_b32 %s, 5, v0" % v(t1))
    A.e("v_lshl_add_u32 %s, %s, %d, %s" % (v(t0), v(t1), 2 if natural else 4, v(t0)))
    A.e("v_mul_u32_u24 %s, %d, %s" % (v(t0), stride, v(t0)))
    A.e("v_and_b32 %s, 7, v0" % v(t1))
    A.e("v_lshl_add_u32 %s, %s, 4, %s" % (v(t0), v(t1), v(t0)))
    A.e("s_lshl_b32 s27, %s, %d" % (s(S_W), colshift))
    A.e("v_add_u32 %s, s27, %s" % (v(dst0), v(t0)))
    for c in range(1, 4):
        g0, r1 = c >> 1, c & 1
        rows = (8 if natural else 4) * g0 + 2 * r1
        A.e("v_add_u32 %s, %d, %s" % (v(dst0 + c), rows * stride, v(dst0)))
    if dst1 is not None:
        if oob_w3:
            A.e("s_cmp_eq_u32 %s, 3" % s(S_W))
            A.e("s_cselect_b32 s27, 0x40000000, 128")
        else:
            A.e("s_mov_b32 s27, 128")
        for c in range(4):
            A.e("v_add_u32 %s, s27, %s" % (v(dst1 + c), v(dst0 + c)))


def wa_lane(A, dst, t0):
    A.e("v_bfe_u32 %s, v0, 3, 2" % v(t0))
    A.e("v_mul_u32_u24 %s, %d, %s" % (v(dst), CH, v(t0)))
    A.e("v_bfe_u32 %s, v0, 2, 1" % v(t0))
    A.e("v_lshl_add_u32 %s, %s, 7, %s" % (v(dst), v(t0), v(dst)))
    A.e("v_lshrrev_b32 %s, 5, v0" % v(t0))
    A.e("v_lshl_add_u32 %s, %s, 8, %s" % (v(dst), v(t0), v(dst)))
    A.e("v_and_b32 %s, 3, v0" % v(t0))
    A.e("v_lshl_add_u32 %s, %s, 3, %s" % (v(dst), v(t0), v(dst)))


def xreduce(A, op, r, tmp):
    for sw in ("v_permlane16_swap_b32", "v_permlane32_swap_b32"):
        A.e("v_mov_b32 %s, %s" % (v(tmp), v(r)))
        A.e("s_nop 1")
        A.e("%s %s, %s" % (sw, v(tmp), v(r)))
        A.e("s_nop 1")
        A.e("%s %s, %s, %s" % (op, v(r), v(r), v(tmp)))


def round_bf16(A, r):
    A.e("v_cvt_pk_bf16_f32 %s, %s, %s" % (v(r), v(r), v(r)))
    A.e("v_lshlrev_b32 %s, 16, %s" % (v(r), v(r)))


def partial_ops(A, base_off, srd, vst, vst2, aux):
    A.e("s_lshl_b32 s27, %s, 5" % s(S_G))
    A.e("s_add_u32 s27, s27, %s" % s(S_RB))
    A.e("s_mul_i32 s27, s27, %d" % PART)
    A.e("s_lshl_b32 s28, %s, 14" % s(S_W))
    A.e("s_add_u32 s27, s27, s28")
    A.e("s_add_u32 s30, s27, %d" % base_off)
    A.e("v_lshlrev_b32 %s, 4, v0" % v(vst))
    A.e("s_cmp_eq_u32 %s, 3" % s(S_W))
    A.e("s_cselect_b32 s27, 0x40000000, 0")
    A.e("v_add_u32 %s, s27, %s" % (v(vst2), v(vst)))
    cv, stores = [], []
    for tp in range(4):
        for rt in range(4):
            d = ACC(2 * tp, rt)
            for k in range(2):
                r = ACC(2 * tp + k, rt)
                cv.append(("v", "v_cvt_pk_bf16_f32 %s, %s, %s" % (v(d + 2 * k), v(r), v(r + 1))))
                cv.append(("v", "v_cvt_pk_bf16_f32 %s, %s, %s" % (v(d + 2 * k + 1), v(r + 2), v(r + 3))))
            if rt == 0 and tp:
                stores.append(("s", "s_add_u32 s30, s30, 4096"))
            stores.append(("m", "buffer_store_dwordx4 %s, %s, %s, s30 offen offset:%d %s" % (
                v(d, 4), v(vst if tp < 2 else vst2), s(srd, 4), rt * 1024, aux)))
    return cv, stores


def gen_main(A, o):
    nst = [0]

    def stamp():
        if o.get("stamps"):
            A.e("s_memtime s[96:97]")
            A.e("s_memrealtime s[98:99]")
            A.e("s_waitcnt lgkmcnt(0)")
            A.e("v_writelane_b32 v35, s96, %d" % nst[0])
            A.e("v_writelane_b32 v35, s98, %d" % (32 + nst[0]))
            A.lds_q = []
            nst[0] += 1

    A.raw(kernel_header(KMAIN))
    A.e("s_cmp_ge_u32 s2, 256")
    A.e("s_cbranch_scc1 L_done")
    if o.get("stamps"):
        A.e("s_memrealtime s[100:101]")
        A.e("v_mov_b32 v35, 0")
    stamp()
    A.e("s_load_dwordx2 %s, s[0:1], 0" % s(S_X, 2))
    A.e("s_load_dwordx2 %s, s[0:1], 48" % s(S_WG, 2))
    A.e("s_load_dwordx2 %s, s[0:1], 56" % s(S_WU, 2))
    A.e("s_load_dwordx2 %s, s[0:1], 24" % s(S_WQ, 2))
    A.e("s_load_dwordx2 %s, s[0:1], 64" % s(S_WD, 2))
    A.e("s_load_dwordx2 %s, s[0:1], 32" % s(S_WO, 2))
    A.e("s_load_dwordx2 %s, s[0:1], 8" % s(S_SRDK, 2))
    A.e("s_load_dwordx2 %s, s[0:1], 16" % s(S_SRDV, 2))
    A.e("s_load_dwordx2 %s, s[0:1], 88" % s(S_WS, 2))
    A.e("v_lshrrev_b32 v6, 6, v0")
    A.e("v_and_b32 v0, 63, v0")
    A.e("v_readfirstlane_b32 %s, v6" % s(S_W))
    A.e("s_and_b32 %s, s2, 7" % s(S_G))
    A.e("s_lshr_b32 %s, s2, 3" % s(S_RB))
    A.e("s_and_b32 %s, %s, 1" % (s(S_HH), s(S_W)))
    A.e("s_lshr_b32 %s, %s, 1" % (s(S_KH), s(S_W)))
    if o.get("cpf", 1):
        A.e("s_getpc_b64 s[28:29]")
        A.label("L_pc")
        A.e("s_lshl_b32 s27, %s, 2" % s(S_RB))
        A.e("s_add_u32 s27, s27, %s" % s(S_W))
        A.e("s_mul_i32 s27, s27, 5")
        A.e("v_add_u32 v10, s27, v0")
        A.e("v_min_u32 v10, (L_hot_end - L_pc) / 128, v10")
        A.e("v_lshlrev_b32 v10, 7, v10")
        A.e("v_mov_b32 v11, s29")
        A.e("v_add_co_u32 v10, vcc, s28, v10")
        A.e("s_nop 1")
        A.e("v_addc_co_u32 v11, vcc, 0, v11, vcc")
        A.e("s_mov_b64 exec, 0x1f")
        A.vm("global_load_dword %s, v[10:11], off" % v(V_DUM), "pf")
        A.e("s_mov_b64 exec, -1")
    A.e("v_and_b32 v7, 15, v0")
    A.e("v_lshrrev_b32 v8, 4, v0")
    A.e("v_mul_u32_u24 v9, 896, v7")
    A.e("v_lshl_add_u32 v9, v8, 4, v9")
    A.e("s_lshl_b32 s27, %s, 2" % s(S_RB))
    A.e("s_add_u32 s27, s27, %s" % s(S_W))
    A.e("s_mul_i32 s30, s27, %d" % (16 * 896))
    A.e("v_lshlrev_b32 %s, 4, v7" % v(V_BA))
    A.e("v_lshl_add_u32 %s, v8, 10, %s" % (v(V_BA), v(V_BA)))
    A.e("v_lshlrev_b32 %s, 4, v0" % v(V_ST))
    voffsets(A, V_OFF_GU, None, 3584, True, 7, 10, False)
    A.e("s_mul_i32 %s, %s, %d" % (s(S_RING), s(S_W), NS_P * HS))
    A.e("s_add_u32 %s, %s, %d" % (s(S_RING), s(S_RING), RING_P))
    A.e("s_waitcnt lgkmcnt(0)")
    if o.get("fine"): stamp()
    make_srd(A, S_X, None, 2048 * 896)
    RAW = 36
    for t in range(14):
        A.vm("buffer_load_dwordx4 %s, v9, %s, s30 offen offset:%d" % (v(RAW + 4 * t, 4), s(S_X, 4), t * 64), "x%d" % t)
    A.e("s_lshl_b32 s29, %s, 9" % s(S_G))
    make_srd(A, S_WG, None, 448 * 3584, 29, True)
    make_srd(A, S_WU, None, 448 * 3584, 29, True)
    GU = Phase("gu", 14, S_WG, S_WU, V_OFF_GU, V_OFF_GU, 3584, 0)
    QP = Phase("q", 14, S_WQ, S_WQ, V_OFF_Q, V_OFF_Q + 4, 8192, 0)
    DP = Phase("d", 8, S_WD, S_WD, V_OFF_D, V_OFF_D + 4, 896, 0)
    st = Stream(A, [GU, QP, DP], NS_P, SIGMA)
    A.e("s_lshl_b32 s29, %s, 10" % s(S_G))
    make_srd(A, S_WQ, None, 448 * 8192, 29)
    A.e("s_mul_i32 s29, %s, %d" % (s(S_G), 256 * 896))
    make_srd(A, S_WD, None, 1792 * 896, 29, True)
    A.e("s_mul_i32 s29, %s, %d" % (s(S_G), 512 * 896))
    make_srd(A, S_WO, None, 4096 * 896, 29)
    def pf_gu():
        A.e("s_mul_i32 s27, %s, 14" % s(S_RB))
        A.e("v_add_u32 v10, s27, v0")
        A.e("v_mul_u32_u24 v11, 3584, v10")
        A.e("s_lshl_b32 s28, %s, 7" % s(S_W))
        A.e("s_mov_b64 exec, 0x3fff")
        A.vm("buffer_load_dword %s, v11, %s, s28 offen" % (v(V_DUM), s(S_WG, 4)), "pf")
        A.vm("buffer_load_dword %s, v11, %s, s28 offen" % (v(V_DUM), s(S_WU, 4)), "pf")
        A.e("s_mov_b64 exec, -1")

    def pf_q():
        A.e("s_mul_i32 s27, %s, 14" % s(S_RB))
        A.e("v_lshrrev_b32 v13, 1, v0")
        A.e("v_add_u32 v13, s27, v13")
        A.e("v_lshlrev_b32 v13, 13, v13")
        A.e("v_and_b32 v14, 1, v0")
        A.e("v_lshl_add_u32 v13, v14, 7, v13")
        A.e("s_lshl_b32 s28, %s, 8" % s(S_W))
        A.e("s_mov_b64 exec, 0xfffffff")
        A.vm("buffer_load_dword %s, v13, %s, s28 offen" % (v(V_DUM), s(S_WQ, 4)), "pf")
        A.e("s_mov_b64 exec, -1")

    def pf_d():
        A.e("s_lshl_b32 s27, %s, 2" % s(S_RB))
        A.e("s_add_u32 s27, s27, %s" % s(S_W))
        A.e("s_mul_i32 s28, s27, %d" % (14 * 128))
        A.e("v_lshlrev_b32 v13, 7, v0")
        A.e("s_mov_b64 exec, 0x3fff")
        A.vm("buffer_load_dword %s, v13, %s, s28 offen" % (v(V_DUM), s(S_WD, 4)), "pf")
        A.e("s_mov_b64 exec, -1")

    pfq, pfd = o.get("pfq", "ln"), o.get("pfd", "e1")
    if o.get("pf", 1):
        pf_gu()
        if pfq == "start":
            pf_q()
        if pfd == "start":
            pf_d()
    voffsets(A, V_OFF_Q, V_OFF_Q + 4, 8192, True, 8, 10, False)
    voffsets(A, V_OFF_D, V_OFF_D + 4, 896, False, 8, 10, True)
    wa_lane(A, V_WA, 10)
    A.e("v_add_u32 %s, %s, %s" % (v(V_WA), s(S_RING), v(V_WA)))
    A.e("s_lshl_b32 s27, %s, 20" % s(S_G))
    A.e("s_lshl_b32 s28, %s, 19" % s(S_KH))
    A.e("s_add_u32 s29, s27, s28")
    make_srd(A, S_SRDK, None, 0x800000, 29)
    make_srd(A, S_SRDV, None, 0x800000, 29)
    A.e("s_mov_b32 %s, 0x80000" % s(S_SRDK + 2))
    A.e("s_mov_b32 %s, 0x80000" % s(S_SRDV + 2))
    A.e("s_mov_b32 %s, 0x10000000" % s(S_WS + 2))
    A.e("s_mov_b32 %s, 0x20000" % s(S_WS + 3))
    A.e("s_cmp_eq_u32 %s, 0" % s(S_HH))
    A.e("s_cselect_b32 %s, %s, %s" % (s(S_SRDPF), s(S_SRDK), s(S_SRDV)))
    A.e("s_cselect_b32 %s, %s, %s" % (s(S_SRDPF + 1), s(S_SRDK + 1), s(S_SRDV + 1)))
    A.e("s_mov_b32 %s, 0x80000" % s(S_SRDPF + 2))
    A.e("s_mov_b32 %s, 0x20000" % s(S_SRDPF + 3))
    at = Attn(A, o.get("attn"))
    at.setup_addresses(S_HH, S_KH, 0, 10)
    for t in at.m0_setup() + at.offsets_init():
        A.e(t)
    A.e("s_mov_b32 %s, %s" % (s(S_WSD), s(S_WS)))
    A.e("s_mov_b32 %s, %s" % (s(S_WSD + 1), s(S_WS + 1)))
    A.e("s_cmp_eq_u32 %s, 7" % s(S_G))
    A.e("s_cselect_b32 %s, 0, %s" % (s(S_WSD + 2), s(S_WS + 2)))
    A.e("s_mov_b32 %s, 0x20000" % s(S_WSD + 3))
    A.e("s_lshl_b32 s27, %s, 9" % s(S_RB))
    A.e("v_lshlrev_b32 v10, 7, v0")
    A.e("v_add_u32 v10, s27, v10")
    A.e("v_mov_b32 v11, 0x40000000")
    A.e("v_cmp_gt_u32 vcc, 4, v0")
    A.e("s_nop 1")
    A.e("v_cndmask_b32 %s, v11, v10, vcc" % v(V_PF))
    A.e("s_mov_b32 %s, %d" % (s(S_PFO), 8 * 16384))

    D0 = 128
    A.e("s_mov_b32 s31, 0xffff0000")
    if o.get("fine"): stamp()
    dq = [op for h in range(st.lead) for op in st.dma_ops(h)]
    cnt = [0]

    def ln(t, every=o.get("lnevery", 10)):
        A.e(t)
        cnt[0] += 1
        if cnt[0] < o.get("lnstart", 160):
            return
        if dq and cnt[0] % every == every - 2:
            for p in dq[0][0]:
                A.e(p)
        if dq and cnt[0] % every == every - 1:
            pre, ld, tag = dq.pop(0)
            A.vm(ld, tag)

    for k in range(56):
        if k % 4 == 0:
            A.vneed("x%d" % (k // 4))
            if k == 0:
                stamp()
        ln("v_lshlrev_b32 %s, 16, %s" % (v(D0 + 2 * k), v(RAW + k)))
        ln("v_and_b32 %s, s31, %s" % (v(D0 + 2 * k + 1), v(RAW + k)))
        if k >= 2:
            if k == 2:
                ln("v_pk_add_f32 v[6:7], %s, %s" % (v(D0, 2), v(D0 + 2, 2)))
            else:
                ln("v_pk_add_f32 v[6:7], v[6:7], %s" % v(D0 + 2 * (k - 1), 2))
    A.e("v_pk_add_f32 v[6:7], v[6:7], %s" % v(D0 + 110, 2))
    A.e("v_add_f32 v6, v6, v7")
    xreduce(A, "v_add_f32", 6, 7)
    A.e("v_mul_f32 v6, %s, v6" % fbits(1.0 / 448))
    A.e("v_mov_b32 v8, v6")
    round_bf16(A, 8)
    A.e("v_sub_f32 v12, v6, v8")
    for k in range(56):
        d = v(D0 + 2 * k, 2)
        ln("v_pk_add_f32 %s, %s, v[8:9] op_sel_hi:[1,0] neg_lo:[0,1] neg_hi:[0,1]" % (d, d))
        if k == 1:
            ln("v_pk_mul_f32 v[10:11], %s, %s" % (v(D0, 2), v(D0, 2)))
        elif k > 1:
            dp = v(D0 + 2 * (k - 1), 2)
            ln("v_pk_fma_f32 v[10:11], %s, %s, v[10:11]" % (dp, dp))
    A.e("v_pk_fma_f32 v[10:11], %s, %s, v[10:11]" % (v(D0 + 110, 2), v(D0 + 110, 2)))
    A.e("v_add_f32 v10, v10, v11")
    xreduce(A, "v_add_f32", 10, 11)
    A.e("v_mul_f32 v10, %s, v10" % fbits(1.0 / 448))
    A.e("v_fma_f32 v10, -v12, v12, v10")
    round_bf16(A, 10)
    A.e("v_add_f32 v10, %s, v10" % fbits(1e-5))
    round_bf16(A, 10)
    A.e("v_sqrt_f32 v10, v10")
    A.e("s_nop 0")
    round_bf16(A, 10)
    A.e("v_rcp_f32 v10, v10")
    A.e("s_lshl_b32 s27, %s, 8" % s(S_W))
    A.e("v_add_u32 v12, s27, %s" % v(V_BA))
    A.e("v_mul_f32 v10, %s, v10" % fbits(QSCALE))
    for t in range(14):
        for k in range(4 * t, 4 * t + 4):
            d = v(D0 + 2 * k, 2)
            ln("v_pk_mul_f32 %s, %s, v[10:11] op_sel_hi:[1,0]" % (d, d))
        for k in range(4 * t, 4 * t + 4):
            ln("v_cvt_pk_bf16_f32 %s, %s, %s" % (v(RAW + k), v(D0 + 2 * k), v(D0 + 2 * k + 1)))
        A.lds("ds_write_b128 v12, %s offset:%d" % (v(RAW + 4 * t, 4), t * 4096), "xw")
    assert not dq
    if pfq == "ln":
        pf_q()
    if pfd == "ln":
        pf_d()
    if o.get("fine"): stamp()
    st.first_a()
    A.need("xw")
    A.e("s_barrier")
    st.first_b(0)
    stamp()
    h = st.run_phase("gu")
    stamp()
    if pfd == "e1":
        pf_d()
    A.e("s_nop 7")
    for t in range(4):
        for rt in range(4):
            g_, u_ = ACC(t, rt), ACC(t + 4, rt)
            d = V_H + ((t >> 1) * 4 + rt) * 4 + 2 * (t & 1)
            for k in range(2):
                A.e("v_pk_mul_f32 %s, %s, %s" % (v(g_ + 2 * k, 2), v(g_ + 2 * k, 2), v(u_ + 2 * k, 2)))
            for k in range(2):
                A.e("v_cvt_pk_bf16_f32 %s, %s, %s" % (v(d + k), v(g_ + 2 * k), v(g_ + 2 * k + 1)))
    h = st.run_phase("q", b_next_last=False)
    stamp()
    if o.get("pf", 1):
        A.e("s_lshl_b32 s27, %s, 9" % s(S_RB))
        A.e("v_lshrrev_b32 v10, 2, v0")
        A.e("v_lshlrev_b32 v10, 14, v10")
        A.e("v_and_b32 v11, 3, v0")
        A.e("v_lshl_add_u32 v10, v11, 7, v10")
        if o.get("pfall"):
            A.vm("buffer_load_dword %s, v10, %s, s27 offen" % (v(V_DUM), s(S_SRDPF, 4)), "pf")
            A.e("s_add_u32 s27, s27, 0x40000")
            A.vm("buffer_load_dword %s, v10, %s, s27 offen" % (v(V_DUM), s(S_SRDPF, 4)), "pf")
        else:
            A.e("s_mov_b32 exec_hi, 0")
            A.vm("buffer_load_dword %s, v10, %s, s27 offen" % (v(V_DUM), s(S_SRDPF, 4)), "pf")
            A.e("s_mov_b64 exec, -1")
    A.e("v_and_b32 v10, 15, v0")
    A.e("v_lshlrev_b32 v10, 4, v10")
    A.e("v_lshrrev_b32 v11, 5, v0")
    A.e("v_lshl_add_u32 v10, v11, 10, v10")
    A.e("v_bfe_u32 v11, v0, 4, 1")
    A.e("v_lshl_add_u32 v10, v11, 3, v10")
    A.e("s_lshl_b32 s27, %s, 14" % s(S_W))
    A.e("v_add_u32 v10, s27, v10")
    A.lds_drain()
    A.e("s_barrier")
    for t in range(8):
        for rt in range(4):
            r = ACC(t, rt)
            for k in range(2):
                A.e("v_cvt_pk_bf16_f32 %s, %s, %s" % (v(r + k), v(r + 2 * k), v(r + 2 * k + 1)))
            A.lds("ds_write_b64 v10, %s offset:%d" % (v(r, 2), t * 2048 + rt * 256), "qw")
    A.e("s_lshl_b32 s27, %s, 15" % s(S_HH))
    A.e("v_add_u32 v11, s27, %s" % v(V_BA))
    A.lds_drain()
    A.e("s_barrier")
    for rt in range(4):
        for ks in range(8):
            A.e("ds_read_b128 %s, v11 offset:%d" % (a(Q(rt, ks), 4), ks * 4096 + rt * 256))
    A.e("s_lshl_b32 s27, %s, 13" % s(S_W))
    A.e("v_add_u32 v10, s27, %s" % v(V_BA))
    A.lds_drain()
    A.e("s_barrier")
    for p in range(2):
        for rt in range(4):
            A.e("ds_write_b128 v10, %s offset:%d" % (v(V_H + (p * 4 + rt) * 4, 4), p * 4096 + rt * 256))
    A.lds_drain()
    A.e("s_barrier")
    st.first_b(h)
    stamp()
    st.run_phase("d")
    stamp()
    A.lds_drain()
    A.e("s_barrier")
    Fill(at.fill_k(0)).flush(A)
    if o.get("pf", 1):
        A.e("s_lshl_b32 s27, %s, 2" % s(S_RB))
        A.e("s_add_u32 s27, s27, %s" % s(S_W))
        A.e("s_mul_i32 s28, s27, %d" % (28 * 128))
        A.e("v_lshlrev_b32 v11, 7, v0")
        A.e("s_mov_b64 exec, 0xfffffff")
        A.e("buffer_load_dword %s, v11, %s, s28 offen" % (v(V_DUM), s(S_WO, 4)))
        A.e("s_mov_b64 exec, -1")
    npf = 1 if o.get("pf", 1) else 0
    cv, stores = partial_ops(A, PD_OFF, S_WSD, 44, 45, o.get("staux", ""))
    ncv = o.get("ncv_pre", 24)
    for it in cv[:ncv]:
        A.e(it[1])
    A.e("s_waitcnt vmcnt(%d)" % npf)
    A.vm_q = []
    A.e("s_barrier")
    stamp()
    T = 36
    XS = lambda i: ((i + 4) % 32) * 1024

    def last_fill():
        it = []
        for sw in ("v_permlane16_swap_b32", "v_permlane32_swap_b32"):
            it += [("v", "v_mov_b32 %s, %s" % (v(T + rt), v(V_L + rt))) for rt in range(4)]
            it += [("v", "%s %s, %s" % (sw, v(T + rt), v(V_L + rt))) for rt in range(4)]
            it += [("v", "v_add_f32 %s, %s, %s" % (v(V_L + rt), v(V_L + rt), v(T + rt))) for rt in range(4)]
        it += [("v", "v_mov_b32 %s, %s" % (v(T + 4 + rt), v(NM(rt)))) for rt in range(4)]
        B = Asm()
        B.e("v_lshlrev_b32 v11, 4, v0")
        B.e("s_lshl_b32 s27, %s, 15" % s(S_W))
        B.e("s_cmp_eq_u32 %s, 3" % s(S_W))
        B.e("s_cselect_b32 s27, 0x20000, s27")
        B.e("v_add_u32 v6, s27, v11")
        B.e("s_xor_b32 s28, %s, 2" % s(S_W))
        B.e("s_lshl_b32 s27, s28, 15")
        B.e("s_cmp_eq_u32 s28, 3")
        B.e("s_cselect_b32 s27, 0x20000, s27")
        B.e("v_add_u32 v7, s27, v11")
        B.e("v_and_b32 v11, 15, v0")
        B.e("v_lshlrev_b32 v11, 4, v11")
        B.e("s_lshl_b32 s27, %s, 9" % s(S_W))
        B.e("s_add_u32 s27, s27, %d" % ML_BASE)
        B.e("v_add_u32 v8, s27, v11")
        B.e("s_xor_b32 s28, s27, 0x400")
        B.e("v_add_u32 v9, s28, v11")
        for l in B.lines:
            l = l.strip()
            it.append(("s" if l.startswith("s_") else "v", l))
        it.append(("l", "ds_write_b128 v8, %s" % v(T + 4, 4), "xw"))
        it.append(("l", "ds_write_b128 v8, %s offset:256" % v(V_L, 4), "xw"))
        for x in range(8):
            for rt in range(4):
                i = rt * 8 + x
                if i < 28:
                    it.append(("l", "ds_write_b128 v6, %s offset:%d" % (a(128 + 4 * i, 4), XS(i)), "xw"))
        return Fill(it, spacing=o.get("xsp", 3))

    ex = at.main(cv[ncv:], stores, last_fill)
    stamp()
    A.e("s_barrier")
    ex.flush(A)
    for i in range(28, 32):
        A.e("ds_write_b128 v6, %s offset:%d" % (a(128 + 4 * i, 4), XS(i)))
    voffsets(A, V_OFF_O, V_OFF_O + 4, 896, False, 8, 24, True)
    A.e("s_mul_i32 %s, %s, %d" % (s(S_RING), s(S_W), NS_O * HS))
    A.e("s_add_u32 %s, %s, %d" % (s(S_RING), s(S_RING), RING_O))
    wa_lane(A, V_WA, 24)
    A.e("v_add_u32 %s, %s, %s" % (v(V_WA), s(S_RING), v(V_WA)))
    A.e("v_and_b32 v24, 15, v0")
    A.e("v_lshrrev_b32 v25, 4, v0")
    A.e("v_lshlrev_b32 %s, 4, v24" % v(V_BA))
    A.e("v_lshl_add_u32 %s, v25, 10, %s" % (v(V_BA), v(V_BA)))
    A.e("s_lshl_b32 s27, %s, 1" % s(S_HH))
    A.e("s_add_u32 s27, s27, %s" % s(S_KH))
    A.e("s_lshl_b32 s27, s27, 14")
    A.e("v_add_u32 v10, s27, %s" % v(V_BA))
    for rt in range(4):
        A.e("v_mov_b32 %s, %s" % (v(20 + rt), v(T + 4 + rt)))
    T = 16
    A.lds_drain()
    A.e("s_barrier")
    A.lds("ds_read_b128 %s, v9" % v(T + 8, 4), "ml")
    A.lds("ds_read_b128 %s, v9 offset:256" % v(T + 12, 4), "ml")
    RX = 36
    for i in range(13):
        A.lds("ds_read_b128 %s, v7 offset:%d" % (v(RX + 4 * i, 4), XS(i)), "r%d" % i)
    A.need("ml")
    for i in range(13, 16):
        A.lds("ds_read_b128 %s, v7 offset:%d" % (v(RX + 4 * i, 4), XS(i)), "r%d" % i)
    for rt in range(4):
        no, npn, lo, lp = T + 4 + rt, T + 8 + rt, V_L + rt, T + 12 + rt
        A.e("v_min_f32 %s, %s, %s" % (v(T), v(no), v(npn)))
        A.e("v_sub_f32 %s, %s, %s" % (v(no), v(T), v(no)))
        A.e("v_sub_f32 %s, %s, %s" % (v(npn), v(T), v(npn)))
        A.e("v_exp_f32 %s, %s" % (v(no), v(no)))
        A.e("v_exp_f32 %s, %s" % (v(npn), v(npn)))
        A.e("v_mul_f32 %s, %s, %s" % (v(lo), v(lo), v(no)))
        A.e("v_fma_f32 %s, %s, %s, %s" % (v(lo), v(lp), v(npn), v(lo)))
        A.e("v_rcp_f32 %s, %s" % (v(lo), v(lo)))
        A.e("s_nop 0")
        A.e("v_mul_f32 %s, %s, %s" % (v(no), v(no), v(lo)))
        A.e("v_mul_f32 %s, %s, %s" % (v(npn), v(npn), v(lo)))

    def bsel(r):
        return v(r & ~1, 2), r & 1

    def combine(i, rx):
        rt, x = i >> 3, i & 7
        r = 128 + 4 * i
        so, so_b = bsel(T + 4 + rt)
        sp, sp_b = bsel(T + 8 + rt)
        for k in range(2):
            A.e("v_pk_mul_f32 %s, %s, %s op_sel:[0,%d] op_sel_hi:[1,%d]" % (v(r + 2 * k, 2), v(r + 2 * k, 2), so, so_b, so_b))
        for k in range(2):
            A.e("v_pk_fma_f32 %s, %s, %s, %s op_sel:[0,%d,0] op_sel_hi:[1,%d,1]" % (
                v(r + 2 * k, 2), v(rx + 2 * k, 2), sp, v(r + 2 * k, 2), sp_b, sp_b))
        d = 128 + 4 * (i & ~1) + 2 * (i & 1)
        for k in range(2):
            A.e("v_cvt_pk_bf16_f32 %s, %s, %s" % (v(d + k), v(r + 2 * k), v(r + 2 * k + 1)))

    for i in range(16):
        A.need("r%d" % i)
        combine(i, RX + 4 * i)
        A.lds("ds_read_b128 %s, v7 offset:%d" % (v(RX + 4 * i, 4), XS(16 + i)), "r%d" % (16 + i))
    A.lds_drain()
    A.e("s_barrier")
    OP = Phase("o", 16, S_WO, S_WO, V_OFF_O, V_OFF_O + 4, 896, 0)
    so = Stream(A, [OP], NS_O, 0)
    A.vm_q = []
    dq2 = [op for h in range(so.lead) for op in so.dma_ops(h)]

    def owrite(i):
        rt, p = i >> 3, (i & 7) >> 1
        A.lds("ds_write_b128 v10, %s offset:%d" % (v(128 + 4 * (i & ~1), 4), p * 4096 + rt * 256), "ow")

    for i in range(16, 32):
        pre, ld, tag = dq2.pop(0)
        for t in pre:
            A.e(t)
        if i < 24:
            owrite(2 * (i - 16) + 1)
        else:
            A.e("s_nop 0")
        A.vm(ld, tag)
        combine(i, RX + 4 * (i - 16))
        if i & 1:
            owrite(i)
    assert not dq2
    so.first_a()
    A.need("ow")
    A.e("s_barrier")
    so.first_b(0)
    stamp()
    so.run_phase("o")
    stamp()
    cv, stores = partial_ops(A, PS_OFF, S_WS, 44, 45, o.get("staux", ""))
    for k in range(16):
        for it in cv[4 * k:4 * k + 4]:
            A.e(it[1])
        while stores[0][0] == "s":
            A.e(stores.pop(0)[1])
        A.e(stores.pop(0)[1])
    if o.get("stamps"):
        A.e("s_waitcnt vmcnt(0)")
        stamp()
        A.e("s_memrealtime s[98:99]")
        A.e("s_waitcnt lgkmcnt(0)")
        A.e("v_writelane_b32 v35, s100, 30")
        A.e("v_writelane_b32 v35, s98, 31")
        A.e("s_lshl_b32 s27, s2, 2")
        A.e("s_add_u32 s27, s27, %s" % s(S_W))
        A.e("s_lshl_b32 s27, s27, 8")
        A.e("s_add_u32 s27, s27, 0x4000000")
        A.e("v_lshlrev_b32 v2, 2, v0")
        A.e("buffer_store_dword v35, v2, %s, s27 offen" % s(S_WS, 4))
    A.label("L_done")
    A.e("s_endpgm")
    A.label("L_hot_end")
    at.rare_paths()


def gen_reduce(A, o):
    A.raw(kernel_header(KRED))
    A.e("s_cmp_ge_u32 s2, 448")
    A.e("s_cbranch_scc1 L_rdone")
    A.e("s_load_dwordx2 s[4:5], s[0:1], 0")
    A.e("s_load_dwordx2 s[8:9], s[0:1], 72")
    A.e("s_load_dwordx2 s[12:13], s[0:1], 88")
    A.e("s_mul_hi_u32 s16, s2, %d" % ((2 ** 32 + 13) // 14))
    A.e("s_mul_i32 s17, s16, 14")
    A.e("s_sub_u32 s17, s2, s17")
    A.e("s_mul_i32 s18, s16, %d" % PART)
    A.e("s_lshl_b32 s19, s17, 12")
    A.e("s_add_u32 s18, s18, s19")
    A.e("v_lshlrev_b32 v1, 4, v0")
    A.e("v_lshrrev_b32 v2, 6, v0")
    A.e("v_and_b32 v3, 15, v0")
    A.e("v_lshl_add_u32 v2, v2, 4, v3")
    A.e("v_mul_u32_u24 v2, 896, v2")
    A.e("v_bfe_u32 v3, v0, 4, 2")
    A.e("v_lshl_add_u32 v2, v3, 3, v2")
    A.e("s_mul_i32 s20, s16, %d" % (64 * 896))
    A.e("s_lshl_b32 s21, s17, 6")
    A.e("s_add_u32 s20, s20, s21")
    A.e("s_waitcnt lgkmcnt(0)")
    A.e("s_mov_b32 s6, %d" % (2048 * 896))
    A.e("s_mov_b32 s7, 0x20000")
    A.e("s_mov_b32 s10, %d" % (2048 * 896))
    A.e("s_mov_b32 s11, 0x20000")
    A.e("s_mov_b32 s14, 0x10000000")
    A.e("s_mov_b32 s15, 0x20000")
    R = 8
    A.e("s_add_u32 s19, s18, %d" % PD_OFF)
    for g in range(7):
        A.vm("buffer_load_dwordx4 %s, v1, s[12:15], s19 offen" % v(R + 4 * g, 4), "d%d" % g)
        A.e("s_add_u32 s19, s19, %d" % (32 * PART))
    A.e("s_add_u32 s19, s18, %d" % PS_OFF)
    for g in range(8):
        A.vm("buffer_load_dwordx4 %s, v1, s[12:15], s19 offen" % v(R + 28 + 4 * g, 4), "s%d" % g)
        A.e("s_add_u32 s19, s19, %d" % (32 * PART))
    A.vm("buffer_load_dwordx2 v[4:5], v2, s[4:7], s20 offen", "x")
    A.vm("buffer_load_dwordx2 v[6:7], v2, s[4:7], s20 offen offset:32", "x")
    DA, SA, T = 68, 76, 84

    def accum(acc, src, first):
        for k in range(4):
            if first:
                A.e("v_lshlrev_b32 %s, 16, %s" % (v(acc + 2 * k), v(src + k)))
                A.e("v_and_b32 %s, 0xffff0000, %s" % (v(acc + 2 * k + 1), v(src + k)))
            else:
                A.e("v_lshlrev_b32 %s, 16, %s" % (v(T), v(src + k)))
                A.e("v_and_b32 %s, 0xffff0000, %s" % (v(T + 1), v(src + k)))
                A.e("v_pk_add_f32 %s, %s, %s" % (v(acc + 2 * k, 2), v(acc + 2 * k, 2), v(T, 2)))

    for g in range(7):
        A.vneed("d%d" % g)
        accum(DA, R + 4 * g, g == 0)
    for k in range(8):
        A.e("v_mul_f32 %s, %s, %s" % (v(DA + k), fbits(1.0 / (QSCALE * QSCALE)), v(DA + k)))
    for k in range(4):
        A.e("v_cvt_pk_bf16_f32 %s, %s, %s" % (v(T), v(DA + 2 * k), v(DA + 2 * k + 1)))
        A.e("v_lshlrev_b32 %s, 16, %s" % (v(DA + 2 * k), v(T)))
        A.e("v_and_b32 %s, 0xffff0000, %s" % (v(DA + 2 * k + 1), v(T)))
    for k in range(8):
        A.e("v_mul_f32 %s, %s, %s" % (v(T + k), fbits(-1.4426950408889634), v(DA + k)))
    for k in range(8):
        A.e("v_exp_f32 %s, %s" % (v(T + k), v(T + k)))
    for k in range(8):
        A.e("v_add_f32 %s, 1.0, %s" % (v(T + k), v(T + k)))
    for k in range(8):
        A.e("v_rcp_f32 %s, %s" % (v(T + k), v(T + k)))
    for k in range(8):
        A.e("v_mul_f32 %s, %s, %s" % (v(DA + k), v(DA + k), v(T + k)))
    for k in range(4):
        A.e("v_cvt_pk_bf16_f32 %s, %s, %s" % (v(T), v(DA + 2 * k), v(DA + 2 * k + 1)))
        A.e("v_lshlrev_b32 %s, 16, %s" % (v(DA + 2 * k), v(T)))
        A.e("v_and_b32 %s, 0xffff0000, %s" % (v(DA + 2 * k + 1), v(T)))
    for g in range(8):
        A.vneed("s%d" % g)
        accum(SA, R + 28 + 4 * g, g == 0)
    A.vneed("x")
    for k in range(4):
        A.e("v_cvt_pk_bf16_f32 %s, %s, %s" % (v(T), v(SA + 2 * k), v(SA + 2 * k + 1)))
        A.e("v_lshlrev_b32 %s, 16, %s" % (v(SA + 2 * k), v(T)))
        A.e("v_and_b32 %s, 0xffff0000, %s" % (v(SA + 2 * k + 1), v(T)))
        A.e("v_pk_mul_f32 %s, %s, %s" % (v(SA + 2 * k, 2), v(SA + 2 * k, 2), v(DA + 2 * k, 2)))
        A.e("v_cvt_pk_bf16_f32 %s, %s, %s" % (v(T), v(SA + 2 * k), v(SA + 2 * k + 1)))
        A.e("v_lshlrev_b32 %s, 16, %s" % (v(SA + 2 * k), v(T)))
        A.e("v_and_b32 %s, 0xffff0000, %s" % (v(SA + 2 * k + 1), v(T)))
        A.e("v_lshlrev_b32 %s, 16, %s" % (v(T + 2), v(4 + k)))
        A.e("v_and_b32 %s, 0xffff0000, %s" % (v(T + 3), v(4 + k)))
        A.e("v_pk_add_f32 %s, %s, %s" % (v(SA + 2 * k, 2), v(SA + 2 * k, 2), v(T + 2, 2)))
        A.e("v_cvt_pk_bf16_f32 %s, %s, %s" % (v(4 + k), v(SA + 2 * k), v(SA + 2 * k + 1)))
    A.e("buffer_store_dwordx2 v[4:5], v2, s[8:11], s20 offen")
    A.e("buffer_store_dwordx2 v[6:7], v2, s[8:11], s20 offen offset:32")
    A.label("L_rdone")
    A.e("s_endpgm")


HEADER = open("cdna_kernels/%s.s.ref" % BASE).read().split("; Override launch")[0]


def gen(o):
    A = Asm()
    A.raw(HEADER.rstrip())
    A.raw("; @launch kernel=%s grid=(256,1,1) block=(256,1,1) lds=163840" % KMAIN)
    if not o.get("nored"):
        A.raw("; @launch kernel=%s grid=(448,1,1) block=(256,1,1) lds=0" % KRED)
    A.raw('.amdgcn_target "amdgcn-amd-amdhsa--gfx950"')
    A.raw(".text")
    gen_main(A, o)
    A.vm_q = []
    A.lds_q = []
    gen_reduce(A, o)
    A.raw('.section .rodata,"a"')
    A.raw(".p2align 6")
    A.raw(kernel_desc(KMAIN, 512, 256))
    A.raw(".p2align 6")
    A.raw(kernel_desc(KRED, 96, 96, sgpr=32))
    return A.text()


if __name__ == "__main__":
    o = json.loads(sys.argv[2]) if len(sys.argv) > 2 else {}
    open(sys.argv[1], "w").write(gen(o))
```

```python
from asmlib import Asm, v, a, s

CH = 1056
TILE = 16 * CH
SLOT = 2 * TILE
VBASE = 2 * SLOT
LDS_ATT_END = 4 * SLOT

V_KA, V_VA, V_KD, V_VD = 1, 2, 3, 4
V_MX = 5
V_T = 6
V_L = 12
V_F = 16
V_VA1, V_PF, V_DUM = 32, 33, 34
V_NM = 48
V_SP = 64
V_OK = 128

S_SRDK, S_SRDV = 4, 8
S_KO0, S_KO1, S_VO = 21, 22, 23
S_KB, S_VB = 24, 25
S_CNT = 26
S_SRDPF, S_PFO = 56, 62
S_16K = 63
S_M0 = 64
THRESH = "0x41c00000"
MF = "v_mfma_f32_16x16x32_bf16"


def NM(rt):
    return V_NM + 4 * rt


def SP(p, rt):
    return V_SP + 32 * p + 8 * rt


def Q(rt, ks):
    return 32 * rt + 4 * ks


def O(rt, dbl):
    r = 128 + (rt * 8 + (dbl & 7)) * 4
    return v(r, 4) if dbl < 8 else a(r, 4)


class Soft:
    def __init__(self, p, on=True):
        self.exps = []
        self.ready = []
        self.later = []
        if on:
            for rt in range(4):
                b = SP(p, rt)
                for i in range(8):
                    post = ["v_add_f32 %s, %s, %s" % (v(V_L + rt), v(V_L + rt), v(b + i))]
                    if i & 1:
                        post.append("v_cvt_pk_bf16_f32 %s, %s, %s" % (v(b + (i >> 1)), v(b + i - 1), v(b + i)))
                    self.exps.append(("v_exp_f32 %s, %s" % (v(b + i), v(b + i)), post))
        self.done = 0

    def gap(self, A, free, want_exp):
        self.ready += self.later
        self.later = []
        if free >= 2 and self.exps and want_exp and len(self.ready) <= 3:
            t, post = self.exps.pop(0)
            A.e(t)
            self.later = post
            self.done += 1
            return
        while free > 0 and self.ready:
            A.e(self.ready.pop(0))
            free -= 1

    def empty(self):
        return not (self.exps or self.ready or self.later)

    def flush(self, A):
        while not self.empty():
            had = bool(self.later)
            if had:
                A.e("s_nop 0")
            self.gap(A, 2, True)


class Fill:
    def __init__(self, items, spacing=4):
        self.q = list(items)
        self.spacing = spacing
        self.since = 99
        self.armed = False

    def gap(self, A, free):
        self.since += 1
        ns = 0
        while self.q:
            it = self.q[0]
            if it[0] == "s":
                if ns >= 2:
                    break
                A.e(it[1])
                ns += 1
            elif it[0] == "d":
                if not self.armed:
                    if self.since + 1 < self.spacing:
                        free = self._bypass(A, free)
                        break
                    A.e(it[1])
                    self.armed = True
                    free = self._bypass(A, free)
                    break
                if free <= 0:
                    break
                A.e(it[2])
                self.armed = False
                self.since = 0
                free -= 1
            elif it[0] in ("m", "l"):
                if free <= 0:
                    break
                if self.since < self.spacing:
                    free = self._bypass(A, free)
                    break
                if it[0] == "m":
                    A.vm(it[1], "st")
                else:
                    A.lds(it[1], it[2])
                self.since = 0
                free -= 1
            else:
                if free <= 0:
                    break
                A.e(it[1])
                free -= 1
            self.q.pop(0)
        return free

    def _bypass(self, A, free):
        i = 1
        while free > 0 and i < len(self.q):
            if self.q[i][0] == "v":
                A.e(self.q.pop(i)[1])
                free -= 1
            elif self.q[i][0] == "s" and not self.q[i][1].startswith("s_add_u32 s2"):
                break
            else:
                i += 1
        return free

    def flush(self, A):
        while self.q:
            it = self.q.pop(0)
            if it[0] == "d":
                if not self.armed:
                    A.e(it[1])
                    A.e("s_nop 0")
                self.armed = False
                A.e(it[2])
            elif it[0] == "l":
                A.lds(it[1], it[2])
            elif it[0] == "m":
                A.vm(it[1], "st")
            else:
                A.e(it[1])


class Fill2:
    def __init__(self, f0, f1):
        self.f = (f0, f1)

    def gap(self, A, free):
        free = self.f[0].gap(A, free)
        return self.f[1].gap(A, free)

    def flush(self, A):
        self.f[0].flush(A)
        self.f[1].flush(A)


class Attn:
    def __init__(self, A, opt=None):
        self.A = A
        self.o = dict(nbuf=4, dma=True, barrier=True, softmax=True, reads=True,
                      dma_start=0, dma_step=4, aux="", chk=30, nexp_b=12, max0=4, bar_back=2, waitgrp=1, m0pre=True)
        self.o.update(opt or {})
        self.sm = None
        self.dbx = 0

    def F(self, f):
        return V_F + 4 * (f % self.o["nbuf"])

    def read_ops(self, f, kslot, vslot):
        if not self.o["reads"]:
            return []
        r = self.F(f)
        if f < 16:
            ks, kt = f >> 1, f & 1
            return [("ds_read_b128 %s, %s offset:%d" % (v(r, 4), v(V_KA), kslot * SLOT + kt * 8 * CH + 64 * ks), "f%d" % f)]
        db = (f - 16) ^ self.dbx
        base = vslot * SLOT + ((db >> 2) & 1) * 4 * CH + (db & 3) * 32
        return [("ds_read_b64_tr_b16 %s, %s offset:%d" % (v(r + 2 * u, 2), v(V_VA if db < 8 else V_VA1), base + u * 512), "f%d" % f)
                for u in range(2)]

    def dma_k(self, tt, slot):
        return [self.m0_op(0, slot, tt),
                "buffer_load_dwordx4 %s, %s, %s offen offset:%d %s lds" % (
                    v(V_KD), s(S_SRDK, 4), s(S_KO0 if tt < 4 else S_KO1), 1024 * (tt & 3), self.o["aux"])]

    def dma_v(self, qq, slot):
        cbl, c = qq >> 2, qq & 3
        imm = c * 1024 + cbl * 128
        return [self.m0_op(1, slot, qq),
                "buffer_load_dwordx4 %s, %s, %s offen offset:%d %s lds" % (
                    v(V_VD), s(S_SRDV, 4), s(S_VO), imm, self.o["aux"])]

    @staticmethod
    def m0_const(isv, slot, k):
        if isv:
            return slot * SLOT + k * CH - ((k & 3) * 1024 + (k >> 2) * 128)
        return slot * SLOT + k * CH - 1024 * (k & 3)

    def m0_op(self, isv, slot, k):
        if self.o["m0pre"]:
            return "s_mov_b32 m0, %s" % s(S_M0 + isv * 16 + slot * 8 + k)
        return "s_add_u32 m0, %s, %d" % (s(S_VB if isv else S_KB), self.m0_const(isv, slot, k))

    def m0_setup(self):
        if not self.o["m0pre"]:
            return []
        return ["s_add_u32 %s, %s, %d" % (s(S_M0 + isv * 16 + slot * 8 + k), s(S_VB if isv else S_KB), self.m0_const(isv, slot, k))
                for isv in range(2) for slot in range(2) for k in range(8)]

    def emit_dma_block(self, pairs):
        for m0, ld in pairs:
            self.A.e(m0)
            self.A.e("s_nop 0")
            self.A.e(ld)

    def adv_k(self):
        return ["s_add_u32 %s, %s, %s" % (s(S_KO0), s(S_KO0), s(S_16K)),
                "s_add_u32 %s, %s, %s" % (s(S_KO1), s(S_KO1), s(S_16K))]

    def adv_v(self):
        return ["s_add_u32 %s, %s, %s" % (s(S_VO), s(S_VO), s(S_16K))]

    def max_ops(self, p):
        regs = [SP(p, rt) + 4 * kt + i for kt in range(2) for rt in range(4) for i in range(4)]
        ops = ["v_max3_f32 %s, %s, %s, %s" % (v(V_MX), v(regs[0]), v(regs[1]), v(regs[2]))]
        i = 3
        while i < 32:
            r2 = regs[min(i + 1, 31)]
            ops.append("v_max3_f32 %s, %s, %s, %s" % (v(V_MX), v(V_MX), v(regs[i]), v(r2)))
            i += 2
        return ops

    def qk_mfma(self, i, p, first_c):
        f, rt = i >> 2, i & 3
        ks, kt = f >> 1, f & 1
        d = v(SP(p, rt) + 4 * kt, 4)
        c = d if ks else first_c(rt)
        return "%s %s, %s, %s, %s" % (MF, d, v(self.F(f), 4), a(Q(rt, ks), 4), c)

    def pv_mfma(self, i, p, zero=False):
        db, rt = i >> 2, i & 3
        o = O(rt, db ^ self.dbx)
        return "%s %s, %s, %s, %s" % (MF, o, v(self.F(16 + db), 4), v(SP(p, rt), 4), "0" if zero else o)

    def _need(self, f):
        wg = self.o["waitgrp"]
        if f % wg == 0:
            self.A.need("f%d" % (f + wg - 1))

    def phase_a(self, j, qk=True, first=False, vreads=True, extra=None, vmw=1):
        A, nb = self.A, self.o["nbuf"]
        p, pn = j & 1, (j + 1) & 1
        sm = self.sm
        first_c = (lambda rt: "0") if first else (lambda rt: v(NM(rt), 4))
        bar_at = 63 - 4 * self.o["bar_back"]
        nxt = nb
        pend = []
        nexp = len(sm.exps) if sm else 0
        done0 = sm.done if sm else 0
        last_exp_gap = 52
        for i in range(64):
            if qk:
                if not (i & 3):
                    self._need(i >> 2)
                A.e(self.qk_mfma(i, pn, first_c))
            if i == bar_at:
                assert not pend
                A.lds_drain("vmcnt(%d)" % (vmw(extra) if callable(vmw) else vmw))
                if self.o["barrier"]:
                    A.e("s_barrier")
            if (i & 3) == 3:
                while nxt <= (i >> 2) + nb and (nxt < 16 or (i >= bar_at and vreads)):
                    if nxt >= 16 or qk:
                        pend += self.read_ops(nxt, pn, p)
                    nxt += 1
            free = 2
            k = min(len(pend), 2 if len(pend) > 2 else 1)
            if i == 63:
                k = len(pend)
            for t, tag in pend[:k]:
                A.lds(t, tag)
                free -= 1
            pend = pend[k:]
            if extra and not sm:
                extra.gap(A, free)
            if sm:
                want = (sm.done - done0) * last_exp_gap <= i * nexp
                if qk:
                    if extra:
                        n0 = len(A.lines)
                        if not (want and free >= 2 and sm.exps and len(sm.ready + sm.later) <= 3):
                            free = extra.gap(A, min(free, 1)) + free - min(free, 1)
                        else:
                            extra.gap(A, 0)
                    sm.gap(A, free, want)
                elif not sm.empty():
                    if sm.later:
                        A.e("s_nop 0")
                    sm.gap(A, 2, True)
        if sm:
            assert sm.empty(), (len(sm.exps), sm.ready, sm.later)
        self.sm = None
        self.nxt = nxt

    def phase_b(self, j, check=True, dmas=(), kreads=True, post=(), rare=None, pf=None, zero=False, extra=None, extra_from=0):
        A, nb = self.A, self.o["nbuf"]
        p, pn = j & 1, (j + 1) & 1
        check = check and self.o["softmax"]
        mo = self.max_ops(pn) if check else []
        chk = self.o["chk"]
        dm0 = {}
        dld = {}
        g = self.o["dma_start"]
        for m0, ld in dmas:
            dm0[g] = m0
            dld[g + 1] = ld
            g += self.o["dma_step"]
        assert g - self.o["dma_step"] + 1 <= 63
        post = list(post)
        nxt = self.nxt
        pend = []
        sm = None
        nmax = len(mo)
        for i in range(64):
            if not (i & 3):
                self._need(16 + (i >> 2))
            A.e(self.pv_mfma(i, p, zero))
            if i == chk and check:
                A.e("s_cbranch_vccnz %s" % rare[0])
                A.label(rare[1])
                sm = Soft(pn)
            if (i & 3) == 3:
                while nxt <= 16 + (i >> 2) + nb and (nxt < 32 or kreads):
                    pend += self.read_ops(nxt % 32, p, p)
                    nxt += 1
            free = 2
            if i == 62 and pf:
                A.e(pf)
                free -= 1
            if i in dld:
                A.e(dld[i])
                free -= 1
            if i in dm0:
                A.e(dm0[i])
            k = min(len(pend), 1, free)
            if i == 63:
                k = len(pend)
            for t, tag in pend[:k]:
                A.lds(t, tag)
                free -= 1
            pend = pend[k:]
            if mo and i >= self.o["max0"]:
                while free > 0 and mo and (nmax - len(mo)) * (chk - 3 - self.o["max0"]) <= (i - self.o["max0"]) * nmax:
                    A.e(mo.pop(0))
                    free -= 1
                    break
            if check and i == chk - 1:
                assert not mo, mo
                A.e("v_cmp_lt_f32 vcc, %s, %s" % (THRESH, v(V_MX)))
            if sm:
                want = sm.done * (63 - chk) <= (i - chk) * self.o["nexp_b"] and sm.done < self.o["nexp_b"]
                sm.gap(A, free, want)
            if dmas:
                last = lambda k: self.o["dma_start"] + k * self.o["dma_step"] + 2
                if i == last(7):
                    A.e(self.adv_v()[0])
                if i == last(11):
                    A.e(self.adv_k()[0])
                if i == last(15):
                    A.e(self.adv_k()[1])
            if extra and i >= extra_from:
                extra.gap(A, free)
            if post and i == 63:
                if i == 63:
                    for t in post:
                        if t[0] == "@":
                            A.label(t[1:])
                        else:
                            A.e(t)
                    post = []
                else:
                    A.e(post.pop(0))
        self.sm = sm

    def rowmax(self, p, rt, dst, tmp):
        A = self.A
        b = SP(p, rt)
        A.e("v_max3_f32 %s, %s, %s, %s" % (v(dst), v(b), v(b + 1), v(b + 2)))
        A.e("v_max3_f32 %s, %s, %s, %s" % (v(dst), v(dst), v(b + 3), v(b + 4)))
        A.e("v_max3_f32 %s, %s, %s, %s" % (v(dst), v(dst), v(b + 5), v(b + 6)))
        A.e("v_max_f32 %s, %s, %s" % (v(dst), v(dst), v(b + 7)))
        for sw in ("v_permlane16_swap_b32", "v_permlane32_swap_b32"):
            A.e("v_mov_b32 %s, %s" % (v(tmp), v(dst)))
            A.e("s_nop 1")
            A.e("%s %s, %s" % (sw, v(tmp), v(dst)))
            A.e("s_nop 1")
            A.e("v_max_f32 %s, %s, %s" % (v(dst), v(dst), v(tmp)))

    def init_max(self, p, ex):
        A = self.A
        T, U = 36, 40
        ops = ["s_nop 3"]
        for k in range(4):
            for rt in range(4):
                b = SP(p, rt)
                if k == 0:
                    ops.append("v_max3_f32 %s, %s, %s, %s" % (v(T + rt), v(b), v(b + 1), v(b + 2)))
                elif k < 3:
                    ops.append("v_max3_f32 %s, %s, %s, %s" % (v(T + rt), v(T + rt), v(b + 2 * k + 1), v(b + 2 * k + 2)))
                else:
                    ops.append("v_max_f32 %s, %s, %s" % (v(T + rt), v(T + rt), v(b + 7)))
        for sw in ("v_permlane16_swap_b32", "v_permlane32_swap_b32"):
            ops += ["v_mov_b32 %s, %s" % (v(U + rt), v(T + rt)) for rt in range(4)]
            ops += ["s_nop 0"]
            ops += ["%s %s, %s" % (sw, v(U + rt), v(T + rt)) for rt in range(4)]
            ops += ["v_max_f32 %s, %s, %s" % (v(T + rt), v(T + rt), v(U + rt)) for rt in range(4)]
        for rt in range(4):
            b = SP(p, rt)
            for i in range(0, 8, 2):
                ops.append("v_pk_add_f32 %s, %s, %s op_sel:[0,%d] op_sel_hi:[1,%d] neg_lo:[0,1] neg_hi:[0,1]" % (
                    v(b + i, 2), v(b + i, 2), v((T + rt) & ~1, 2), rt & 1, rt & 1))
            for i in range(4):
                ops.append("v_sub_f32 %s, 0, %s" % (v(NM(rt) + i), v(T + rt)))
            ops.append("v_mov_b32 %s, 0" % v(V_L + rt))
        for k, t in enumerate(ops):
            A.e(t)
            if k % 4 == 3:
                ex.gap(A, 1)
        ex.flush(A)
        self.sm = Soft(p, self.o["softmax"])

    def rare_path(self, p, name, back):
        A = self.A
        A.label(name)
        A.e("s_nop 7")
        T = V_T
        for rt in range(4):
            self.rowmax(p, rt, T, T + 1)
            A.e("v_max_f32 %s, 0, %s" % (v(T), v(T)))
            A.e("v_ceil_f32 %s, %s" % (v(T), v(T)))
            A.e("v_cvt_i32_f32 %s, -%s" % (v(T + 1), v(T)))
            A.e("v_ldexp_f32 %s, 1.0, %s" % (v(T + 1), v(T + 1)))
            b = SP(p, rt)
            for i in range(4):
                A.e("v_sub_f32 %s, %s, %s" % (v(NM(rt) + i), v(NM(rt) + i), v(T)))
            for i in range(8):
                A.e("v_sub_f32 %s, %s, %s" % (v(b + i), v(b + i), v(T)))
            A.e("v_mul_f32 %s, %s, %s" % (v(V_L + rt), v(V_L + rt), v(T + 1)))
            pb = SP(p ^ 1, rt)
            for i in range(4):
                A.e("v_lshlrev_b32 %s, 16, %s" % (v(T + 2), v(pb + i)))
                A.e("v_and_b32 %s, 0xffff0000, %s" % (v(T + 3), v(pb + i)))
                A.e("v_mul_f32 %s, %s, %s" % (v(T + 2), v(T + 2), v(T + 1)))
                A.e("v_mul_f32 %s, %s, %s" % (v(T + 3), v(T + 3), v(T + 1)))
                A.e("v_cvt_pk_bf16_f32 %s, %s, %s" % (v(pb + i), v(T + 2), v(T + 3)))
            for i in range(32):
                r = 128 + rt * 32 + i
                A.e("v_mul_f32 %s, %s, %s" % (v(r), v(r), v(T + 1)))
            for i in range(0, 32, 4):
                r = 128 + rt * 32 + i
                for k in range(4):
                    A.e("v_accvgpr_read_b32 %s, %s" % (v(T + 2 + k), a(r + k)))
                for k in range(4):
                    A.e("v_mul_f32 %s, %s, %s" % (v(T + 2 + k), v(T + 2 + k), v(T + 1)))
                for k in range(4):
                    A.e("v_accvgpr_write_b32 %s, %s" % (a(r + k), v(T + 2 + k)))
        A.e("s_nop 1")
        A.e("s_branch %s" % back)

    def dma_list(self, j, k=True, vv=True):
        if not self.o["dma"]:
            return []
        lst = []
        if vv:
            lst += [self.dma_v(q, (j + 1) & 1) for q in range(8)]
        if k:
            lst += [self.dma_k(t, (j + 1) & 1) for t in range(8)]
        return lst

    def setup_addresses(self, s_hh, s_kh, vlane, t0):
        A = self.A
        t1, t2, t3 = t0 + 1, t0 + 2, t0 + 3
        A.e("v_bfe_u32 %s, %s, 1, 3" % (v(t1), v(vlane)))
        A.e("v_mul_u32_u24 %s, %d, %s" % (v(V_KA), CH, v(t1)))
        A.e("v_and_b32 %s, 1, %s" % (v(t1), v(vlane)))
        A.e("v_lshrrev_b32 %s, 4, %s" % (v(t2), v(vlane)))
        A.e("v_xor_b32 %s, %s, %s" % (v(t3), v(t1), v(t2)))
        A.e("v_lshlrev_b32 %s, 4, %s" % (v(t3), v(t3)))
        A.e("v_lshl_add_u32 %s, %s, 9, %s" % (v(t3), v(t1), v(t3)))
        A.e("v_add_u32 %s, %s, %s" % (v(V_KA), v(V_KA), v(t3)))
        A.e("s_mul_i32 s27, %s, %d" % (s(s_kh), TILE))
        A.e("v_add_u32 %s, s27, %s" % (v(V_KA), v(V_KA)))
        A.e("v_and_b32 %s, 31, %s" % (v(t0), v(vlane)))
        A.e("v_lshrrev_b32 %s, 5, %s" % (v(t2), v(vlane)))
        A.e("v_xor_b32 %s, %s, %s" % (v(t3), v(t0), v(t2)))
        A.e("v_lshlrev_b32 %s, 4, %s" % (v(t3), v(t3)))
        A.e("v_lshl_add_u32 %s, %s, 9, %s" % (v(t3), v(t2), v(t3)))
        A.e("s_lshl_b32 s28, %s, 13" % s(s_hh))
        A.e("v_add_u32 %s, s28, %s" % (v(V_KD), v(t3)))
        A.e("s_mul_i32 s29, %s, %d" % (s(s_hh), 8 * CH))
        A.e("s_add_u32 %s, s27, s29" % s(S_KB))
        A.e("s_add_u32 %s, %s, %d" % (s(S_VB), s(S_KB), VBASE))
        A.e("v_bfe_u32 %s, %s, 3, 2" % (v(t0), v(vlane)))
        A.e("v_mul_u32_u24 %s, %d, %s" % (v(V_VA), CH, v(t0)))
        A.e("v_bfe_u32 %s, %s, 2, 1" % (v(t0), v(vlane)))
        A.e("v_lshl_add_u32 %s, %s, 1, %s" % (v(t0), v(t2), v(t0)))
        A.e("v_lshl_add_u32 %s, %s, 7, %s" % (v(V_VA), v(t0), v(V_VA)))
        A.e("v_and_b32 %s, 3, %s" % (v(t0), v(vlane)))
        A.e("v_lshl_add_u32 %s, %s, 3, %s" % (v(V_VA), v(t0), v(V_VA)))
        A.e("s_add_u32 s27, s27, %d" % VBASE)
        A.e("s_mul_i32 s29, %s, %d" % (s(s_kh), 8 * CH))
        A.e("s_sub_u32 s28, s27, s29")
        A.e("s_add_u32 s28, s28, %d" % (8 * CH))
        A.e("s_add_u32 s27, s27, s29")
        A.e("v_add_u32 %s, s28, %s" % (v(V_VA1), v(V_VA)))
        A.e("v_add_u32 %s, s27, %s" % (v(V_VA), v(V_VA)))
        A.e("v_lshrrev_b32 %s, 4, %s" % (v(t0), v(vlane)))
        A.e("v_lshlrev_b32 %s, 3, %s" % (v(t0), v(t0)))
        A.e("v_bfe_u32 %s, %s, 3, 1" % (v(t1), v(vlane)))
        A.e("v_add_u32 %s, %s, %s" % (v(t0), v(t0), v(t1)))
        A.e("v_and_b32 %s, 7, %s" % (v(t1), v(vlane)))
        A.e("v_lshlrev_b32 %s, 4, %s" % (v(t1), v(t1)))
        A.e("v_lshl_add_u32 %s, %s, 9, %s" % (v(t0), v(t0), v(t1)))
        A.e("s_lshl_b32 s28, %s, 8" % s(s_hh))
        A.e("v_add_u32 %s, s28, %s" % (v(V_VD), v(t0)))

    def offsets_init(self):
        return ["s_mov_b32 %s, 0" % s(S_KO0), "s_mov_b32 %s, 4096" % s(S_KO1), "s_mov_b32 %s, 0" % s(S_VO), "s_mov_b32 %s, 16384" % s(S_16K)]

    def fill_k(self, slot):
        return [("d",) + tuple(self.dma_k(t, slot)) for t in range(8)] + [("s", t) for t in self.adv_k()]

    def fill_v(self, slot):
        return [("d",) + tuple(self.dma_v(t, slot)) for t in range(8)] + [("s", t) for t in self.adv_v()]

    def pf_op(self):
        if not self.o.get("roll", True):
            return None
        return "buffer_load_dword %s, %s, %s, %s offen" % (v(V_DUM), v(V_PF), s(S_SRDPF, 4), s(S_PFO))

    def main(self, pre_v, stores, last_fill, signal=None, after_loop=None):
        A, nb = self.A, self.o["nbuf"]
        for f in range(nb):
            for t, tag in self.read_ops(f, 0, 0):
                A.lds(t, tag)
        ex = Fill(self.fill_k(1) + self.fill_v(0) + pre_v, spacing=3)

        def w0(e):
            assert not any(it[0] == "d" for it in e.q), e.q
            return 0
        self.phase_a(-1, first=True, vreads=False, extra=ex, vmw=w0)
        ex.flush(A)
        for f in range(nb):
            for t, tag in self.read_ops(f, 1, 0):
                A.lds(t, tag)
        self.init_max(0, Fill(self.fill_k(0), spacing=1))
        sm = self.sm
        ref = self._steady_state()
        while sm.done < ref[0] or len(sm.ready) + len(sm.later) > ref[1]:
            if sm.later:
                A.e("s_nop 0")
            if sm.done < ref[0]:
                sm.gap(A, 2, True)
            else:
                sm.gap(A, 1, False)
        ex = Fill(stores, spacing=3)
        nst = len([1 for it in stores if it[0] == "m"])
        self.phase_a(0, extra=ex, vmw=lambda e: nst - len([1 for it in e.q if it[0] == "m"]))
        ex.flush(A)
        post = ["s_add_u32 %s, %s, %s" % (s(S_PFO), s(S_PFO), s(S_16K))]
        self.phase_b(0, dmas=self.dma_list(0), post=post + ["s_mov_b32 %s, 0" % s(S_CNT)],
                     rare=("L_rare0", "L_back0"), pf=self.pf_op(), zero=True)
        state = (self.sm.done, [t.split()[0] for t in self.sm.ready + self.sm.later])
        entry_q = list(A.lds_q)
        A.raw(".p2align 3")
        A.label("L_att_loop")
        for jj in (1, 2):
            self.phase_a(jj)
            pp = list(post)
            if jj == 1 and signal:
                pp += ["s_and_b32 s27, %s, 7" % s(S_CNT), "s_cbranch_scc0 %s" % signal[0], "@" + signal[1]]
            if jj == 2:
                pp += ["s_add_u32 %s, %s, 1" % (s(S_CNT), s(S_CNT)), "s_cmp_lt_u32 %s, 15" % s(S_CNT)]
            self.phase_b(jj, dmas=self.dma_list(jj), post=pp, rare=("L_rare%d" % jj, "L_back%d" % jj), pf=self.pf_op())
            assert A.lds_q == entry_q, (A.lds_q, entry_q)
            assert (self.sm.done, [t.split()[0] for t in self.sm.ready + self.sm.later]) == state
        A.e("s_cbranch_scc1 L_att_loop")
        self.dbx = 8
        if after_loop:
            after_loop()
        A.lds_drain("vmcnt(0)")
        A.e("s_barrier")
        for f in range(16, 16 + nb):
            for t, tag in self.read_ops(f, 0, 1):
                A.lds(t, tag)
        self.nxt = 16 + nb
        sm = self.sm
        prev = sm.ready + sm.later
        for t, post in sm.exps:
            A.e(t)
            for u in prev:
                A.e(u)
            prev = post
        A.e("s_nop 0")
        for u in prev:
            A.e(u)
        self.sm = None
        A.e("s_nop 0")
        ex = last_fill()
        self.phase_b(31, check=False, kreads=False, extra=ex)
        return ex

    def _steady_state(self):
        if not self.o["softmax"]:
            return (0, 0)
        tmp = Attn(Asm(), self.o)
        tmp.nxt = 16 + self.o["nbuf"]
        tmp.phase_b(1, dmas=tmp.dma_list(1), rare=("x", "y"), pf=tmp.pf_op())
        return (tmp.sm.done, len(tmp.sm.ready) + len(tmp.sm.later))

    def rare_paths(self):
        if not self.o["softmax"]:
            return
        self.rare_path(1, "L_rare0", "L_back0")
        self.rare_path(0, "L_rare1", "L_back1")
        self.rare_path(1, "L_rare2", "L_back2")
```

```python
import sys, json
from asmlib import *
from attn16 import *

BASE = "recurrent_scan__gqa_block_cached__glu_gated_bilinear__prompt"
KMAIN = BASE + "_kernel"
KRED = "final_reduce_kernel"

HS = 4 * CH
RING_P, NS_P = 57344, 6
RING_O, NS_O = 65536, 5
ML_BASE = 98304
SIGMA = 5

V_FA = 16
V_FB = 36
V_H = 68
V_OFF_GU = 100
V_OFF_Q = 104
V_OFF_D = 112
V_WA, V_BA = 120, 121
V_ST = 122
V_OFF_O = 104
S_W, S_HH, S_KH, S_G, S_RB = 16, 17, 18, 19, 20
S_WS = 12
S_X, S_WG, S_WU, S_WQ, S_WD, S_WO = 32, 36, 40, 44, 48, 52
S_RING, S_SO = 60, 61
S_WSD = 32
V_ST2 = 123
S_STAMP = 64
PD_OFF, PS_OFF = 0, 0x1000000
PART = 56 * 1024
FL_OFF = 0x3000000
S_DBG, S_OUT, S_X2 = 36, 40, 44
V_POLL = 46
V_PO, V_XO = (1, 3), (4, 33)
QSCALE = 1.4426950408889634 / 16.0


def fbits(x):
    import struct
    return "0x%08x" % struct.unpack("<I", struct.pack("<f", x))[0]


def ACC(t, rt):
    return 128 + (t * 4 + rt) * 4


class Phase:
    def __init__(self, name, nk, srd0, srd1, off0, off1, stride, act):
        self.name, self.nk, self.srd, self.off, self.stride, self.act = name, nk, (srd0, srd1), (off0, off1), stride, act


class Stream:
    def __init__(self, A, phases, ns, sigma, tail_swap=False):
        self.A, self.ns, self.sigma = A, ns, sigma
        self.hs = []
        gk = 0
        for ph in phases:
            for ks in range(ph.nk):
                for cb in range(2):
                    self.hs.append((ph, ks, cb, gk))
                gk += 1
        if tail_swap:
            self.hs[-3], self.hs[-2] = self.hs[-2], self.hs[-3]
        self.lead = ns - 1
        self.pend = []
        self.b_loaded = set()
        self.cur_so = None

    def slot(self, h):
        return ((h + self.sigma) % self.ns) * HS

    def dma_ops(self, h):
        if h >= len(self.hs):
            return []
        ph, ks, cb, gk = self.hs[h]
        out = []
        for c in range(4):
            pre = []
            if c == 0 and self.cur_so != ks * 32 * ph.stride:
                self.cur_so = ks * 32 * ph.stride
                pre.append("s_mov_b32 %s, %d" % (s(S_SO), self.cur_so))
            pre.append("s_add_u32 m0, %s, %d" % (s(S_RING), self.slot(h) + c * CH))
            ld = "buffer_load_dwordx4 %s, %s, %s offen lds" % (v(ph.off[cb] + c), s(ph.srd[cb], 4), s(S_SO))
            out.append((pre, ld, "w%d" % h))
        return out

    def issue_initial(self):
        for h in range(self.lead):
            for pre, ld, tag in self.dma_ops(h):
                for t in pre:
                    self.A.e(t)
                self.A.e("s_nop 0")
                self.A.vm(ld, tag)

    def a_reads(self, h, x):
        if h >= len(self.hs):
            return []
        return [("ds_read_b64_tr_b16 %s, %s offset:%d" % (v(V_FA + 4 * x + 2 * u, 2), v(V_WA), self.slot(h) + x * 32 + u * 512),
                 "a%d_%d" % (h, x)) for u in range(2)]

    def b_reads(self, ph, ks, gk):
        return [("ds_read_b128 %s, %s offset:%d" % (v(V_FB + 16 * (gk & 1) + 4 * rt, 4), v(V_BA), ph.act + ks * 4096 + rt * 256),
                 "b%d" % gk) for rt in range(4)]

    def first_a(self):
        A = self.A
        A.vneed("w0")
        for x in range(4):
            for t, tag in self.a_reads(0, x):
                A.lds(t, tag)

    def first_b(self, h):
        ph, ks, cb, gk = self.hs[h]
        self.b_loaded.add(gk)
        for t, tag in self.b_reads(ph, ks, gk):
            self.A.lds(t, tag)

    def period(self, h, extra=None, b_next=True):
        A = self.A
        ph, ks, cb, gk = self.hs[h]
        dm = self.dma_ops(h + self.lead)
        br = []
        if b_next and h + 1 < len(self.hs) and self.hs[h + 1][3] not in self.b_loaded:
            nph, nks, _, ngk = self.hs[h + 1]
            br = self.b_reads(nph, nks, ngk)
            self.b_loaded.add(ngk)
        for i in range(16):
            x, rt = i >> 2, i & 3
            if rt == 0:
                if x == 0:
                    A.need("b%d" % gk)
                A.need("a%d_%d" % (h, x))
            acc = v(ACC(4 * cb + x, rt), 4)
            A.e("%s %s, %s, %s, %s" % (MF, acc, v(V_FA + 4 * x, 4), v(V_FB + 16 * (gk & 1) + 4 * rt, 4), acc if ks else "0"))
            free = 2
            if rt == 3:
                if x == 0:
                    A.vneed("w%d" % (h + 1))
                self.pend += self.a_reads(h + 1, x)
            if self.pend:
                t, tag = self.pend.pop(0)
                A.lds(t, tag)
                free -= 1
            if rt == 0 and dm:
                for t in dm[x][0]:
                    A.e(t)
            if rt == 1 and dm:
                A.vm(dm[x][1], dm[x][2])
                free -= 1
            if rt == 2 and br:
                t, tag = br[x]
                A.lds(t, tag)
                free -= 1
            if extra:
                extra.gap(A, free)

    def flush_pend(self):
        for t, tag in self.pend:
            self.A.lds(t, tag)
        self.pend = []

    def run_phase(self, name, extra=None, b_next_last=True):
        idx = [h for h, e in enumerate(self.hs) if e[0].name == name]
        ex = None
        for n, h in enumerate(idx):
            for key in (n, n - len(idx)):
                if extra and key in extra:
                    ex = extra[key]()
            self.period(h, ex, b_next=(b_next_last or h != idx[-1]))
        self.last_fill = ex
        self.flush_pend()
        return idx[-1] + 1


def make_srd(A, sreg, karg_reg, size, off_sreg=None, zero_if_g7=False):
    if off_sreg is not None:
        A.e("s_add_u32 %s, %s, %s" % (s(sreg), s(sreg), s(off_sreg)))
        A.e("s_addc_u32 %s, %s, 0" % (s(sreg + 1), s(sreg + 1)))
        A.e("s_sub_u32 %s, %d, %s" % (s(sreg + 2), size, s(off_sreg)))
    else:
        A.e("s_mov_b32 %s, %d" % (s(sreg + 2), size))
    if zero_if_g7:
        A.e("s_cmp_eq_u32 %s, 7" % s(S_G))
        A.e("s_cselect_b32 %s, 0, %s" % (s(sreg + 2), s(sreg + 2)))
    A.e("s_mov_b32 %s, 0x20000" % s(sreg + 3))


def voffsets(A, dst0, dst1, stride, natural, colshift, t0, oob_w3):
    t1, t2 = t0 + 1, t0 + 2
    A.e("v_bfe_u32 %s, v0, 3, 1" % v(t0))
    A.e("v_bfe_u32 %s, v0, 4, 1" % v(t1))
    A.e("v_lshl_add_u32 %s, %s, %d, %s" % (v(t0), v(t1), 4 if natural else 3, v(t0)))
    A.e("v_lshrrev_b32 %s, 5, v0" % v(t1))
    A.e("v_lshl_add_u32 %s, %s, %d, %s" % (v(t0), v(t1), 2 if natural else 4, v(t0)))
    A.e("v_mul_u32_u24 %s, %d, %s" % (v(t0), stride, v(t0)))
    A.e("v_and_b32 %s, 7, v0" % v(t1))
    A.e("v_lshl_add_u32 %s, %s, 4, %s" % (v(t0), v(t1), v(t0)))
    A.e("s_lshl_b32 s27, %s, %d" % (s(S_W), colshift))
    A.e("v_add_u32 %s, s27, %s" % (v(dst0), v(t0)))
    for c in range(1, 4):
        g0, r1 = c >> 1, c & 1
        rows = (8 if natural else 4) * g0 + 2 * r1
        A.e("v_add_u32 %s, %d, %s" % (v(dst0 + c), rows * stride, v(dst0)))
    if dst1 is not None:
        if oob_w3:
            A.e("s_cmp_eq_u32 %s, 3" % s(S_W))
            A.e("s_cselect_b32 s27, 0x40000000, 128")
        else:
            A.e("s_mov_b32 s27, 128")
        for c in range(4):
            A.e("v_add_u32 %s, s27, %s" % (v(dst1 + c), v(dst0 + c)))


def wa_lane(A, dst, t0):
    A.e("v_bfe_u32 %s, v0, 3, 2" % v(t0))
    A.e("v_mul_u32_u24 %s, %d, %s" % (v(dst), CH, v(t0)))
    A.e("v_bfe_u32 %s, v0, 2, 1" % v(t0))
    A.e("v_lshl_add_u32 %s, %s, 7, %s" % (v(dst), v(t0), v(dst)))
    A.e("v_lshrrev_b32 %s, 5, v0" % v(t0))
    A.e("v_lshl_add_u32 %s, %s, 8, %s" % (v(dst), v(t0), v(dst)))
    A.e("v_and_b32 %s, 3, v0" % v(t0))
    A.e("v_lshl_add_u32 %s, %s, 3, %s" % (v(dst), v(t0), v(dst)))


def xreduce(A, op, r, tmp):
    for sw in ("v_permlane16_swap_b32", "v_permlane32_swap_b32"):
        A.e("v_mov_b32 %s, %s" % (v(tmp), v(r)))
        A.e("s_nop 1")
        A.e("%s %s, %s" % (sw, v(tmp), v(r)))
        A.e("s_nop 1")
        A.e("%s %s, %s, %s" % (op, v(r), v(r), v(tmp)))


def round_bf16(A, r):
    A.e("v_cvt_pk_bf16_f32 %s, %s, %s" % (v(r), v(r), v(r)))
    A.e("v_lshlrev_b32 %s, 16, %s" % (v(r), v(r)))


def partial_ops(A, base_off, srd, vst, vst2, aux):
    A.e("s_lshl_b32 s27, %s, 5" % s(S_G))
    A.e("s_add_u32 s27, s27, %s" % s(S_RB))
    A.e("s_mul_i32 s27, s27, %d" % PART)
    A.e("s_lshl_b32 s28, %s, 14" % s(S_W))
    A.e("s_add_u32 s27, s27, s28")
    A.e("s_add_u32 s30, s27, %d" % base_off)
    A.e("v_lshlrev_b32 %s, 4, v0" % v(vst))
    A.e("s_cmp_eq_u32 %s, 3" % s(S_W))
    A.e("s_cselect_b32 s27, 0x40000000, 0")
    A.e("v_add_u32 %s, s27, %s" % (v(vst2), v(vst)))
    cv, stores = [], []
    for tp in range(4):
        for rt in range(4):
            d = ACC(2 * tp, rt)
            for k in range(2):
                r = ACC(2 * tp + k, rt)
                cv.append(("v", "v_cvt_pk_bf16_f32 %s, %s, %s" % (v(d + 2 * k), v(r), v(r + 1))))
                cv.append(("v", "v_cvt_pk_bf16_f32 %s, %s, %s" % (v(d + 2 * k + 1), v(r + 2), v(r + 3))))
            if rt == 0 and tp:
                stores.append(("s", "s_add_u32 s30, s30, 4096"))
            stores.append(("m", "buffer_store_dwordx4 %s, %s, %s, s30 offen offset:%d %s" % (
                v(d, 4), v(vst if tp < 2 else vst2), s(srd, 4), rt * 1024, aux)))
    return cv, stores


def final_math(A, D, S, X, DA, SA, T, need_d, need_s, nd=7, part=0):
    def accum(acc, src, first):
        for k in range(4):
            if first:
                A.e("v_lshlrev_b32 %s, 16, %s" % (v(acc + 2 * k), v(src + k)))
                A.e("v_and_b32 %s, s31, %s" % (v(acc + 2 * k + 1), v(src + k)))
            else:
                A.e("v_lshlrev_b32 %s, 16, %s" % (v(T + 2 * (k & 1)), v(src + k)))
                A.e("v_and_b32 %s, s31, %s" % (v(T + 2 * (k & 1) + 1), v(src + k)))
                A.e("v_pk_add_f32 %s, %s, %s" % (v(acc + 2 * k, 2), v(acc + 2 * k, 2), v(T + 2 * (k & 1), 2)))

    def rnd(r):
        for k in range(4):
            A.e("v_cvt_pk_bf16_f32 %s, %s, %s" % (v(T + k), v(r + 2 * k), v(r + 2 * k + 1)))
        for k in range(4):
            A.e("v_lshlrev_b32 %s, 16, %s" % (v(r + 2 * k), v(T + k)))
            A.e("v_and_b32 %s, s31, %s" % (v(r + 2 * k + 1), v(T + k)))

    if part in (0, 1):
        for g in range(nd):
            need_d(g)
            accum(DA, D + 4 * g, g == 0)
        for k in range(8):
            A.e("v_mul_f32 %s, %s, %s" % (v(DA + k), fbits(1.0 / (QSCALE * QSCALE)), v(DA + k)))
        rnd(DA)
        for k in range(8):
            A.e("v_mul_f32 %s, %s, %s" % (v(T + k), fbits(-1.4426950408889634), v(DA + k)))
        for k in range(8):
            A.e("v_exp_f32 %s, %s" % (v(T + k), v(T + k)))
        for k in range(8):
            A.e("v_add_f32 %s, 1.0, %s" % (v(T + k), v(T + k)))
        for k in range(8):
            A.e("v_rcp_f32 %s, %s" % (v(T + k), v(T + k)))
        for k in range(8):
            A.e("v_mul_f32 %s, %s, %s" % (v(DA + k), v(DA + k), v(T + k)))
        rnd(DA)
    if part in (0, 2):
        for g in range(8):
            need_s(g)
            accum(SA, S + 4 * g, g == 0)
        rnd(SA)
        for k in range(4):
            A.e("v_pk_mul_f32 %s, %s, %s" % (v(SA + 2 * k, 2), v(SA + 2 * k, 2), v(DA + 2 * k, 2)))
        rnd(SA)
        for k in range(4):
            A.e("v_lshlrev_b32 %s, 16, %s" % (v(T + 2 * k), v(X + k)))
            A.e("v_and_b32 %s, s31, %s" % (v(T + 2 * k + 1), v(X + k)))
        for k in range(4):
            A.e("v_pk_add_f32 %s, %s, %s" % (v(SA + 2 * k, 2), v(SA + 2 * k, 2), v(T + 2 * k, 2)))
        for k in range(4):
            A.e("v_cvt_pk_bf16_f32 %s, %s, %s" % (v(X + k), v(SA + 2 * k), v(SA + 2 * k + 1)))


def tail_addresses(A):
    A.e("s_mul_i32 s26, %s, 7" % s(S_G))
    A.e("s_add_u32 s26, s26, %s" % s(S_W))
    A.e("v_lshlrev_b32 v6, 4, v0")
    A.e("v_and_b32 v7, 15, v0")
    A.e("v_mul_u32_u24 v7, 896, v7")
    A.e("v_lshrrev_b32 v8, 4, v0")
    A.e("v_lshl_add_u32 v7, v8, 3, v7")
    for c in range(2):
        if c:
            A.e("s_add_u32 s26, s26, 4")
        A.e("s_lshl_b32 s27, s26, 10")
        A.e("s_and_b32 s28, s26, 3")
        A.e("s_mul_i32 s28, s28, %d" % (16 * 896))
        A.e("s_lshr_b32 s29, s26, 2")
        A.e("s_lshl_b32 s29, s29, 6")
        A.e("s_add_u32 s28, s28, s29")
        if c:
            A.e("s_cmp_eq_u32 %s, 3" % s(S_W))
            A.e("s_cselect_b32 s27, 0x40000000, s27")
            A.e("s_cselect_b32 s28, 0x40000000, s28")
        A.e("v_add_u32 %s, s27, v6" % v(V_PO[c]))
        A.e("v_add_u32 %s, s28, v7" % v(V_XO[c]))
    A.e("s_mul_i32 s24, %s, %d" % (s(S_RB), PART))
    A.e("s_mul_i32 s25, %s, %d" % (s(S_RB), 64 * 896))
    A.e("v_readfirstlane_b32 s29, %s" % v(V_POLL))
    A.e("s_cmp_eq_u32 s29, 8")
    A.e("s_cbranch_scc0 L_spinD")
    A.label("L_okD")


def fused_tail(A, o, stamp):
    DR, XR, DA, SA, T = 36, 24, (8, 104), 92, 112
    A.e("s_mov_b32 s31, 0xffff0000")
    A.e("s_lshl_b32 s26, %s, 10" % s(S_RB))
    A.e("s_add_u32 s26, s26, %d" % FL_OFF)
    A.e("s_lshl_b32 s27, %s, 7" % s(S_G))
    A.e("s_add_u32 s27, s27, s26")
    A.e("v_mov_b32 v5, 1")
    A.e("v_lshlrev_b32 v2, 7, v0")

    def dmath(c):
        for k in range(28):
            A.e("v_accvgpr_read_b32 %s, %s" % (v(DR + k), a(32 * c + k)))
        for k in range(4):
            A.e("v_accvgpr_read_b32 %s, %s" % (v(XR + 4 * c + k), a(32 * c + 28 + k)))
        final_math(A, DR, None, None, DA[c], None, T, lambda g: None, None, part=1)

    dmath(0)
    A.e("s_waitcnt vmcnt(0)")
    A.e("s_barrier")
    stamp()
    A.e("s_cmp_lg_u32 %s, 0" % s(S_W))
    A.e("s_cbranch_scc1 L_noflag")
    A.e("s_mov_b64 exec, 1")
    A.e("buffer_store_dword v5, off, %s, s27 sc1" % s(S_WS, 4))
    A.e("s_mov_b64 exec, 0xff")
    A.e("buffer_load_dword v6, v2, %s, s26 offen sc1" % s(S_WS, 4))
    A.e("s_mov_b64 exec, -1")
    A.label("L_noflag")
    dmath(1)
    A.e("s_cmp_lg_u32 %s, 0" % s(S_W))
    A.e("s_cbranch_scc1 L_flagok")
    A.e("s_mov_b32 s28, 0")
    A.e("s_mov_b64 exec, 0xff")
    A.label("L_spinS")
    A.e("s_add_u32 s28, s28, 1")
    A.e("s_waitcnt vmcnt(0)")
    A.e("v_cmp_ne_u32 vcc, 1, v6")
    A.e("s_cmp_gt_u32 s28, 0x100000")
    A.e("s_cbranch_scc1 L_spinS_end")
    A.e("s_cbranch_vccz L_spinS_end")
    if o.get("sleep", 1):
        A.e("s_sleep %d" % o.get("sleep", 1))
    A.e("buffer_load_dword v6, v2, %s, s26 offen sc1" % s(S_WS, 4))
    A.e("s_branch L_spinS")
    A.label("L_spinS_end")
    A.e("s_mov_b64 exec, -1")
    A.label("L_flagok")
    A.e("s_barrier")
    stamp()
    A.vm_q = []
    SR = 128
    for c in range(2):
        A.e("s_add_u32 s27, s24, %d" % PS_OFF)
        for g in range(8):
            A.vm("buffer_load_dwordx4 %s, %s, %s, s27 offen sc1" % (v(SR + 32 * c + 4 * g, 4), v(V_PO[c]), s(S_WS, 4)), "s%d_%d" % (c, g))
            if g < 7:
                A.e("s_add_u32 s27, s27, %d" % (32 * PART))
    for c in range(2):
        final_math(A, None, SR + 32 * c, XR + 4 * c, DA[c], SA, T, None,
                   lambda g, c=c: A.vneed("s%d_%d" % (c, g)), part=2)
        for k in range(2):
            A.vm("buffer_store_dwordx2 %s, %s, %s, s25 offen offset:%d" % (v(XR + 4 * c + 2 * k, 2), v(V_XO[c]), s(S_OUT, 4), 32 * k), "o")


def gen_main(A, o):
    nst = [0]
    fused = o.get("fused", 1)
    staux = "sc1" if fused else o.get("staux", "")

    def stamp(force=False):
        if o.get("stamps") == 1 or (force and o.get("stamps")):
            A.e("s_memtime s[96:97]")
            A.e("s_memrealtime s[98:99]")
            A.e("s_waitcnt lgkmcnt(0)")
            A.e("v_writelane_b32 v35, s96, %d" % nst[0])
            A.e("v_writelane_b32 v35, s98, %d" % (32 + nst[0]))
            A.lds_q = []
            nst[0] += 1

    A.raw(kernel_header(KMAIN))
    A.e("s_cmp_ge_u32 s2, 256")
    A.e("s_cbranch_scc1 L_done")
    if o.get("stamps"):
        A.e("s_memrealtime s[100:101]")
        A.e("v_mov_b32 v35, 0")
    stamp(True)
    A.e("s_load_dwordx2 %s, s[0:1], 0" % s(S_X, 2))
    A.e("s_load_dwordx2 %s, s[0:1], 48" % s(S_WG, 2))
    A.e("s_load_dwordx2 %s, s[0:1], 56" % s(S_WU, 2))
    A.e("s_load_dwordx2 %s, s[0:1], 24" % s(S_WQ, 2))
    A.e("s_load_dwordx2 %s, s[0:1], 64" % s(S_WD, 2))
    A.e("s_load_dwordx2 %s, s[0:1], 32" % s(S_WO, 2))
    A.e("s_load_dwordx2 %s, s[0:1], 8" % s(S_SRDK, 2))
    A.e("s_load_dwordx2 %s, s[0:1], 16" % s(S_SRDV, 2))
    A.e("s_load_dwordx2 %s, s[0:1], 88" % s(S_WS, 2))
    A.e("v_lshrrev_b32 v6, 6, v0")
    A.e("v_and_b32 v0, 63, v0")
    A.e("v_readfirstlane_b32 %s, v6" % s(S_W))
    A.e("s_and_b32 %s, s2, 7" % s(S_G))
    A.e("s_lshr_b32 %s, s2, 3" % s(S_RB))
    A.e("s_and_b32 %s, %s, 1" % (s(S_HH), s(S_W)))
    A.e("s_lshr_b32 %s, %s, 1" % (s(S_KH), s(S_W)))
    if o.get("cpf", 1):
        A.e("s_getpc_b64 s[28:29]")
        A.label("L_pc")
        A.e("s_lshl_b32 s27, %s, 2" % s(S_RB))
        A.e("s_add_u32 s27, s27, %s" % s(S_W))
        A.e("s_mul_i32 s27, s27, 5")
        A.e("v_add_u32 v10, s27, v0")
        A.e("v_min_u32 v10, (L_hot_end - L_pc) / 128, v10")
        A.e("v_lshlrev_b32 v10, 7, v10")
        A.e("v_mov_b32 v11, s29")
        A.e("v_add_co_u32 v10, vcc, s28, v10")
        A.e("s_nop 1")
        A.e("v_addc_co_u32 v11, vcc, 0, v11, vcc")
        A.e("s_mov_b64 exec, 0x1f")
        A.vm("global_load_dword %s, v[10:11], off" % v(V_DUM), "pf")
        A.e("s_mov_b64 exec, -1")
    A.e("v_and_b32 v7, 15, v0")
    A.e("v_lshrrev_b32 v8, 4, v0")
    A.e("v_mul_u32_u24 v9, 896, v7")
    A.e("v_lshl_add_u32 v9, v8, 4, v9")
    A.e("s_lshl_b32 s27, %s, 2" % s(S_RB))
    A.e("s_add_u32 s27, s27, %s" % s(S_W))
    A.e("s_mul_i32 s30, s27, %d" % (16 * 896))
    A.e("v_lshlrev_b32 %s, 4, v7" % v(V_BA))
    A.e("v_lshl_add_u32 %s, v8, 10, %s" % (v(V_BA), v(V_BA)))
    A.e("v_lshlrev_b32 %s, 4, v0" % v(V_ST))
    voffsets(A, V_OFF_GU, None, 3584, True, 7, 10, False)
    A.e("s_mul_i32 %s, %s, %d" % (s(S_RING), s(S_W), NS_P * HS))
    A.e("s_add_u32 %s, %s, %d" % (s(S_RING), s(S_RING), RING_P))
    A.e("s_waitcnt lgkmcnt(0)")
    if o.get("fine"): stamp()
    make_srd(A, S_X, None, 2048 * 896)
    RAW = 36
    for t in range(14):
        A.vm("buffer_load_dwordx4 %s, v9, %s, s30 offen offset:%d" % (v(RAW + 4 * t, 4), s(S_X, 4), t * 64), "x%d" % t)
    A.e("s_lshl_b32 s29, %s, 9" % s(S_G))
    make_srd(A, S_WG, None, 448 * 3584, 29, True)
    make_srd(A, S_WU, None, 448 * 3584, 29, True)
    GU = Phase("gu", 14, S_WG, S_WU, V_OFF_GU, V_OFF_GU, 3584, 0)
    QP = Phase("q", 14, S_WQ, S_WQ, V_OFF_Q, V_OFF_Q + 4, 8192, 0)
    DP = Phase("d", 8, S_WD, S_WD, V_OFF_D, V_OFF_D + 4, 896, 0)
    st = Stream(A, [GU, QP, DP], NS_P, SIGMA)
    A.e("s_lshl_b32 s29, %s, 10" % s(S_G))
    make_srd(A, S_WQ, None, 448 * 8192, 29)
    A.e("s_mul_i32 s29, %s, %d" % (s(S_G), 256 * 896))
    make_srd(A, S_WD, None, 1792 * 896, 29, True)
    A.e("s_mul_i32 s29, %s, %d" % (s(S_G), 512 * 896))
    make_srd(A, S_WO, None, 4096 * 896, 29)
    def pf_gu():
        A.e("s_mul_i32 s27, %s, 14" % s(S_RB))
        A.e("v_add_u32 v10, s27, v0")
        A.e("v_mul_u32_u24 v11, 3584, v10")
        A.e("s_lshl_b32 s28, %s, 7" % s(S_W))
        A.e("s_mov_b64 exec, 0x3fff")
        A.vm("buffer_load_dword %s, v11, %s, s28 offen" % (v(V_DUM), s(S_WG, 4)), "pf")
        A.vm("buffer_load_dword %s, v11, %s, s28 offen" % (v(V_DUM), s(S_WU, 4)), "pf")
        A.e("s_mov_b64 exec, -1")

    def pf_q():
        A.e("s_mul_i32 s27, %s, 14" % s(S_RB))
        A.e("v_lshrrev_b32 v13, 1, v0")
        A.e("v_add_u32 v13, s27, v13")
        A.e("v_lshlrev_b32 v13, 13, v13")
        A.e("v_and_b32 v14, 1, v0")
        A.e("v_lshl_add_u32 v13, v14, 7, v13")
        A.e("s_lshl_b32 s28, %s, 8" % s(S_W))
        A.e("s_mov_b64 exec, 0xfffffff")
        A.vm("buffer_load_dword %s, v13, %s, s28 offen" % (v(V_DUM), s(S_WQ, 4)), "pf")
        A.e("s_mov_b64 exec, -1")

    def pf_d():
        A.e("s_lshl_b32 s27, %s, 2" % s(S_RB))
        A.e("s_add_u32 s27, s27, %s" % s(S_W))
        A.e("s_mul_i32 s28, s27, %d" % (14 * 128))
        A.e("v_lshlrev_b32 v13, 7, v0")
        A.e("s_mov_b64 exec, 0x3fff")
        A.vm("buffer_load_dword %s, v13, %s, s28 offen" % (v(V_DUM), s(S_WD, 4)), "pf")
        A.e("s_mov_b64 exec, -1")

    pfq, pfd = o.get("pfq", "ln"), o.get("pfd", "e1")
    if o.get("pf", 1):
        pf_gu()
        if pfq == "start":
            pf_q()
        if pfd == "start":
            pf_d()
    voffsets(A, V_OFF_Q, V_OFF_Q + 4, 8192, True, 8, 10, False)
    voffsets(A, V_OFF_D, V_OFF_D + 4, 896, False, 8, 10, True)
    wa_lane(A, V_WA, 10)
    A.e("v_add_u32 %s, %s, %s" % (v(V_WA), s(S_RING), v(V_WA)))
    A.e("s_lshl_b32 s27, %s, 20" % s(S_G))
    A.e("s_lshl_b32 s28, %s, 19" % s(S_KH))
    A.e("s_add_u32 s29, s27, s28")
    make_srd(A, S_SRDK, None, 0x800000, 29)
    make_srd(A, S_SRDV, None, 0x800000, 29)
    A.e("s_mov_b32 %s, 0x80000" % s(S_SRDK + 2))
    A.e("s_mov_b32 %s, 0x80000" % s(S_SRDV + 2))
    A.e("s_mov_b32 %s, 0x10000000" % s(S_WS + 2))
    A.e("s_mov_b32 %s, 0x20000" % s(S_WS + 3))
    if fused:
        A.e("s_lshl_b32 s27, %s, 3" % s(S_RB))
        A.e("s_add_u32 s27, s27, %s" % s(S_G))
        A.e("s_lshl_b32 s27, s27, 7")
        A.e("s_add_u32 s27, s27, %d" % FL_OFF)
        A.e("v_mov_b32 v10, 0")
        A.e("s_mov_b64 exec, 1")
        A.vm("buffer_store_dword v10, v10, %s, s27 offen sc1" % s(S_WS, 4), "fl")
        A.e("s_mov_b64 exec, -1")
    A.e("s_cmp_eq_u32 %s, 0" % s(S_HH))
    A.e("s_cselect_b32 %s, %s, %s" % (s(S_SRDPF), s(S_SRDK), s(S_SRDV)))
    A.e("s_cselect_b32 %s, %s, %s" % (s(S_SRDPF + 1), s(S_SRDK + 1), s(S_SRDV + 1)))
    A.e("s_mov_b32 %s, 0x80000" % s(S_SRDPF + 2))
    A.e("s_mov_b32 %s, 0x20000" % s(S_SRDPF + 3))
    at = Attn(A, o.get("attn"))
    at.setup_addresses(S_HH, S_KH, 0, 10)
    for t in at.m0_setup() + at.offsets_init():
        A.e(t)
    A.e("s_mov_b32 %s, %s" % (s(S_WSD), s(S_WS)))
    A.e("s_mov_b32 %s, %s" % (s(S_WSD + 1), s(S_WS + 1)))
    A.e("s_cmp_eq_u32 %s, 7" % s(S_G))
    A.e("s_cselect_b32 %s, 0, %s" % (s(S_WSD + 2), s(S_WS + 2)))
    A.e("s_mov_b32 %s, 0x20000" % s(S_WSD + 3))
    A.e("s_lshl_b32 s27, %s, 9" % s(S_RB))
    A.e("v_lshlrev_b32 v10, 7, v0")
    A.e("v_add_u32 v10, s27, v10")
    A.e("v_mov_b32 v11, 0x40000000")
    A.e("v_cmp_gt_u32 vcc, 4, v0")
    A.e("s_nop 1")
    A.e("v_cndmask_b32 %s, v11, v10, vcc" % v(V_PF))
    A.e("s_mov_b32 %s, %d" % (s(S_PFO), 8 * 16384))

    D0 = 128
    A.e("s_mov_b32 s31, 0xffff0000")
    if o.get("fine"): stamp()
    dq = [op for h in range(st.lead) for op in st.dma_ops(h)]
    cnt = [0]

    def ln(t, every=o.get("lnevery", 10)):
        A.e(t)
        cnt[0] += 1
        if cnt[0] < o.get("lnstart", 160):
            return
        if dq and cnt[0] % every == every - 2:
            for p in dq[0][0]:
                A.e(p)
        if dq and cnt[0] % every == every - 1:
            pre, ld, tag = dq.pop(0)
            A.vm(ld, tag)

    for k in range(56):
        if k % 4 == 0:
            A.vneed("x%d" % (k // 4))
            if k == 0:
                stamp()
        ln("v_lshlrev_b32 %s, 16, %s" % (v(D0 + 2 * k), v(RAW + k)))
        ln("v_and_b32 %s, s31, %s" % (v(D0 + 2 * k + 1), v(RAW + k)))
        if k >= 2:
            if k == 2:
                ln("v_pk_add_f32 v[6:7], %s, %s" % (v(D0, 2), v(D0 + 2, 2)))
            else:
                ln("v_pk_add_f32 v[6:7], v[6:7], %s" % v(D0 + 2 * (k - 1), 2))
    A.e("v_pk_add_f32 v[6:7], v[6:7], %s" % v(D0 + 110, 2))
    A.e("v_add_f32 v6, v6, v7")
    xreduce(A, "v_add_f32", 6, 7)
    A.e("v_mul_f32 v6, %s, v6" % fbits(1.0 / 448))
    A.e("v_mov_b32 v8, v6")
    round_bf16(A, 8)
    A.e("v_sub_f32 v12, v6, v8")
    for k in range(56):
        d = v(D0 + 2 * k, 2)
        ln("v_pk_add_f32 %s, %s, v[8:9] op_sel_hi:[1,0] neg_lo:[0,1] neg_hi:[0,1]" % (d, d))
        if k == 1:
            ln("v_pk_mul_f32 v[10:11], %s, %s" % (v(D0, 2), v(D0, 2)))
        elif k > 1:
            dp = v(D0 + 2 * (k - 1), 2)
            ln("v_pk_fma_f32 v[10:11], %s, %s, v[10:11]" % (dp, dp))
    A.e("v_pk_fma_f32 v[10:11], %s, %s, v[10:11]" % (v(D0 + 110, 2), v(D0 + 110, 2)))
    A.e("v_add_f32 v10, v10, v11")
    xreduce(A, "v_add_f32", 10, 11)
    A.e("v_mul_f32 v10, %s, v10" % fbits(1.0 / 448))
    A.e("v_fma_f32 v10, -v12, v12, v10")
    round_bf16(A, 10)
    A.e("v_add_f32 v10, %s, v10" % fbits(1e-5))
    round_bf16(A, 10)
    A.e("v_sqrt_f32 v10, v10")
    A.e("s_nop 0")
    round_bf16(A, 10)
    A.e("v_rcp_f32 v10, v10")
    A.e("s_lshl_b32 s27, %s, 8" % s(S_W))
    A.e("v_add_u32 v12, s27, %s" % v(V_BA))
    A.e("v_mul_f32 v10, %s, v10" % fbits(QSCALE))
    for t in range(14):
        for k in range(4 * t, 4 * t + 4):
            d = v(D0 + 2 * k, 2)
            ln("v_pk_mul_f32 %s, %s, v[10:11] op_sel_hi:[1,0]" % (d, d))
        for k in range(4 * t, 4 * t + 4):
            ln("v_cvt_pk_bf16_f32 %s, %s, %s" % (v(RAW + k), v(D0 + 2 * k), v(D0 + 2 * k + 1)))
        A.lds("ds_write_b128 v12, %s offset:%d" % (v(RAW + 4 * t, 4), t * 4096), "xw")
    assert not dq
    if pfq == "ln":
        pf_q()
    if pfd == "ln":
        pf_d()
    if o.get("fine"): stamp()
    st.first_a()
    A.need("xw")
    A.e("s_barrier")
    st.first_b(0)
    stamp()
    h = st.run_phase("gu")
    stamp()
    if pfd == "e1":
        pf_d()
    A.e("s_nop 7")
    for t in range(4):
        for rt in range(4):
            g_, u_ = ACC(t, rt), ACC(t + 4, rt)
            d = V_H + ((t >> 1) * 4 + rt) * 4 + 2 * (t & 1)
            for k in range(2):
                A.e("v_pk_mul_f32 %s, %s, %s" % (v(g_ + 2 * k, 2), v(g_ + 2 * k, 2), v(u_ + 2 * k, 2)))
            for k in range(2):
                A.e("v_cvt_pk_bf16_f32 %s, %s, %s" % (v(d + k), v(g_ + 2 * k), v(g_ + 2 * k + 1)))
    h = st.run_phase("q", b_next_last=False)
    stamp()
    if o.get("pf", 1):
        A.e("s_lshl_b32 s27, %s, 9" % s(S_RB))
        A.e("v_lshrrev_b32 v10, 2, v0")
        A.e("v_lshlrev_b32 v10, 14, v10")
        A.e("v_and_b32 v11, 3, v0")
        A.e("v_lshl_add_u32 v10, v11, 7, v10")
        if o.get("pfall"):
            A.vm("buffer_load_dword %s, v10, %s, s27 offen" % (v(V_DUM), s(S_SRDPF, 4)), "pf")
            A.e("s_add_u32 s27, s27, 0x40000")
            A.vm("buffer_load_dword %s, v10, %s, s27 offen" % (v(V_DUM), s(S_SRDPF, 4)), "pf")
        else:
            A.e("s_mov_b32 exec_hi, 0")
            A.vm("buffer_load_dword %s, v10, %s, s27 offen" % (v(V_DUM), s(S_SRDPF, 4)), "pf")
            A.e("s_mov_b64 exec, -1")
    A.e("v_and_b32 v10, 15, v0")
    A.e("v_lshlrev_b32 v10, 4, v10")
    A.e("v_lshrrev_b32 v11, 5, v0")
    A.e("v_lshl_add_u32 v10, v11, 10, v10")
    A.e("v_bfe_u32 v11, v0, 4, 1")
    A.e("v_lshl_add_u32 v10, v11, 3, v10")
    A.e("s_lshl_b32 s27, %s, 14" % s(S_W))
    A.e("v_add_u32 v10, s27, v10")
    if fused:
        A.e("s_load_dwordx2 %s, s[0:1], 80" % s(S_DBG, 2))
        A.e("s_load_dwordx2 %s, s[0:1], 72" % s(S_OUT, 2))
        A.e("s_load_dwordx2 %s, s[0:1], 0" % s(S_X2, 2))
    A.lds_drain()
    if fused:
        make_srd(A, S_DBG, None, 256)
        make_srd(A, S_OUT, None, 2048 * 896)
        make_srd(A, S_X2, None, 2048 * 896)
    A.e("s_barrier")
    for t in range(8):
        for rt in range(4):
            r = ACC(t, rt)
            for k in range(2):
                A.e("v_cvt_pk_bf16_f32 %s, %s, %s" % (v(r + k), v(r + 2 * k), v(r + 2 * k + 1)))
            A.lds("ds_write_b64 v10, %s offset:%d" % (v(r, 2), t * 2048 + rt * 256), "qw")
    A.e("s_lshl_b32 s27, %s, 15" % s(S_HH))
    A.e("v_add_u32 v11, s27, %s" % v(V_BA))
    A.lds_drain()
    A.e("s_barrier")
    for rt in range(4):
        for ks in range(8):
            A.e("ds_read_b128 %s, v11 offset:%d" % (a(Q(rt, ks), 4), ks * 4096 + rt * 256))
    A.e("s_lshl_b32 s27, %s, 13" % s(S_W))
    A.e("v_add_u32 v10, s27, %s" % v(V_BA))
    A.lds_drain()
    A.e("s_barrier")
    for p in range(2):
        for rt in range(4):
            A.e("ds_write_b128 v10, %s offset:%d" % (v(V_H + (p * 4 + rt) * 4, 4), p * 4096 + rt * 256))
    A.lds_drain()
    A.e("s_barrier")
    st.first_b(h)
    stamp()
    st.run_phase("d")
    stamp()
    A.lds_drain()
    A.e("s_barrier")
    Fill(at.fill_k(0)).flush(A)
    if o.get("pf", 1):
        A.e("s_lshl_b32 s27, %s, 2" % s(S_RB))
        A.e("s_add_u32 s27, s27, %s" % s(S_W))
        A.e("s_mul_i32 s28, s27, %d" % (28 * 128))
        A.e("v_lshlrev_b32 v11, 7, v0")
        A.e("s_mov_b64 exec, 0xfffffff")
        A.e("buffer_load_dword %s, v11, %s, s28 offen" % (v(V_DUM), s(S_WO, 4)))
        A.e("s_mov_b64 exec, -1")
    npf = 1 if o.get("pf", 1) else 0
    cv, stores = partial_ops(A, PD_OFF, S_WSD, 44, 45, staux)
    ncv = o.get("ncv_pre", 24)
    for it in cv[:ncv]:
        A.e(it[1])
    A.e("s_waitcnt vmcnt(%d)" % npf)
    A.vm_q = []
    A.e("s_barrier")
    stamp()
    T = 36
    XS = lambda i: ((i + 4) % 32) * 1024

    def last_fill():
        it = []
        for sw in ("v_permlane16_swap_b32", "v_permlane32_swap_b32"):
            it += [("v", "v_mov_b32 %s, %s" % (v(T + rt), v(V_L + rt))) for rt in range(4)]
            it += [("v", "%s %s, %s" % (sw, v(T + rt), v(V_L + rt))) for rt in range(4)]
            it += [("v", "v_add_f32 %s, %s, %s" % (v(V_L + rt), v(V_L + rt), v(T + rt))) for rt in range(4)]
        it += [("v", "v_mov_b32 %s, %s" % (v(T + 4 + rt), v(NM(rt)))) for rt in range(4)]
        B = Asm()
        B.e("v_lshlrev_b32 v11, 4, v0")
        B.e("s_add_u32 s27, %s, 1" % s(S_W))
        B.e("s_lshr_b32 s27, s27, 2")
        B.e("s_add_u32 s27, s27, %s" % s(S_W))
        B.e("s_lshl_b32 s27, s27, 15")
        B.e("v_add_u32 v6, s27, v11")
        B.e("s_xor_b32 s28, %s, 2" % s(S_W))
        B.e("s_add_u32 s27, s28, 1")
        B.e("s_lshr_b32 s27, s27, 2")
        B.e("s_add_u32 s27, s27, s28")
        B.e("s_lshl_b32 s27, s27, 15")
        B.e("v_add_u32 v7, s27, v11")
        B.e("v_and_b32 v11, 15, v0")
        B.e("v_lshlrev_b32 v11, 4, v11")
        B.e("s_lshl_b32 s27, %s, 9" % s(S_W))
        B.e("s_add_u32 s27, s27, %d" % ML_BASE)
        B.e("v_add_u32 v8, s27, v11")
        B.e("s_xor_b32 s28, s27, 0x400")
        B.e("v_add_u32 v9, s28, v11")
        for l in B.lines:
            l = l.strip()
            it.append(("s" if l.startswith("s_") else "v", l))
        it.append(("l", "ds_write_b128 v8, %s" % v(T + 4, 4), "xw"))
        it.append(("l", "ds_write_b128 v8, %s offset:256" % v(V_L, 4), "xw"))
        for x in range(8):
            for rt in range(4):
                i = rt * 8 + x
                if i < 28:
                    it.append(("l", "ds_write_b128 v6, %s offset:%d" % (a(128 + 4 * i, 4), XS(i)), "xw"))
        f0 = Fill(it, spacing=o.get("xsp", 3))
        if not fused:
            return f0
        it = []
        for c in range(2):
            it.append(("s", "s_add_u32 s26, s24, %d" % PD_OFF))
            for g in range(7):
                it.append(("m", "buffer_load_dwordx4 %s, %s, %s, s26 offen sc1" % (a(32 * c + 4 * g, 4), v(V_PO[c]), s(S_WS, 4))))
                if g < 6:
                    it.append(("s", "s_add_u32 s26, s26, %d" % (32 * PART)))
            for k in range(2):
                it.append(("m", "buffer_load_dwordx2 %s, %s, %s, s25 offen offset:%d" % (a(32 * c + 28 + 2 * k, 2), v(V_XO[c]), s(S_X2, 4), 32 * k)))
        return Fill2(f0, Fill(it, spacing=3))

    ex = at.main(cv[ncv:], stores, last_fill, signal=("L_sig", "L_sigback") if fused else None,
                 after_loop=(lambda: tail_addresses(A)) if fused else None)
    stamp()
    A.e("s_barrier")
    ex.flush(A)
    for i in range(28, 32):
        A.e("ds_write_b128 v6, %s offset:%d" % (a(128 + 4 * i, 4), XS(i)))
    voffsets(A, V_OFF_O, V_OFF_O + 4, 896, False, 8, 24, True)
    A.e("s_mul_i32 %s, %s, %d" % (s(S_RING), s(S_W), NS_O * HS))
    A.e("s_add_u32 %s, %s, %d" % (s(S_RING), s(S_RING), RING_O))
    wa_lane(A, V_WA, 24)
    A.e("v_add_u32 %s, %s, %s" % (v(V_WA), s(S_RING), v(V_WA)))
    A.e("v_and_b32 v24, 15, v0")
    A.e("v_lshrrev_b32 v25, 4, v0")
    A.e("v_lshlrev_b32 %s, 4, v24" % v(V_BA))
    A.e("v_lshl_add_u32 %s, v25, 10, %s" % (v(V_BA), v(V_BA)))
    A.e("s_lshl_b32 s27, %s, 1" % s(S_HH))
    A.e("s_add_u32 s27, s27, %s" % s(S_KH))
    A.e("s_lshl_b32 s27, s27, 14")
    A.e("v_add_u32 v10, s27, %s" % v(V_BA))
    for rt in range(4):
        A.e("v_mov_b32 %s, %s" % (v(20 + rt), v(T + 4 + rt)))
    T = 16
    A.lds_drain()
    A.e("s_barrier")
    A.lds("ds_read_b128 %s, v9" % v(T + 8, 4), "ml")
    A.lds("ds_read_b128 %s, v9 offset:256" % v(T + 12, 4), "ml")
    RX = 36
    for i in range(13):
        A.lds("ds_read_b128 %s, v7 offset:%d" % (v(RX + 4 * i, 4), XS(i)), "r%d" % i)
    A.need("ml")
    for i in range(13, 16):
        A.lds("ds_read_b128 %s, v7 offset:%d" % (v(RX + 4 * i, 4), XS(i)), "r%d" % i)
    for rt in range(4):
        no, npn, lo, lp = T + 4 + rt, T + 8 + rt, V_L + rt, T + 12 + rt
        A.e("v_min_f32 %s, %s, %s" % (v(T), v(no), v(npn)))
        A.e("v_sub_f32 %s, %s, %s" % (v(no), v(T), v(no)))
        A.e("v_sub_f32 %s, %s, %s" % (v(npn), v(T), v(npn)))
        A.e("v_exp_f32 %s, %s" % (v(no), v(no)))
        A.e("v_exp_f32 %s, %s" % (v(npn), v(npn)))
        A.e("v_mul_f32 %s, %s, %s" % (v(lo), v(lo), v(no)))
        A.e("v_fma_f32 %s, %s, %s, %s" % (v(lo), v(lp), v(npn), v(lo)))
        A.e("v_rcp_f32 %s, %s" % (v(lo), v(lo)))
        A.e("s_nop 0")
        A.e("v_mul_f32 %s, %s, %s" % (v(no), v(no), v(lo)))
        A.e("v_mul_f32 %s, %s, %s" % (v(npn), v(npn), v(lo)))

    def bsel(r):
        return v(r & ~1, 2), r & 1

    def combine(i, rx):
        rt, x = i >> 3, i & 7
        r = 128 + 4 * i
        so, so_b = bsel(T + 4 + rt)
        sp, sp_b = bsel(T + 8 + rt)
        for k in range(2):
            A.e("v_pk_mul_f32 %s, %s, %s op_sel:[0,%d] op_sel_hi:[1,%d]" % (v(r + 2 * k, 2), v(r + 2 * k, 2), so, so_b, so_b))
        for k in range(2):
            A.e("v_pk_fma_f32 %s, %s, %s, %s op_sel:[0,%d,0] op_sel_hi:[1,%d,1]" % (
                v(r + 2 * k, 2), v(rx + 2 * k, 2), sp, v(r + 2 * k, 2), sp_b, sp_b))
        d = 128 + 4 * (i & ~1) + 2 * (i & 1)
        for k in range(2):
            A.e("v_cvt_pk_bf16_f32 %s, %s, %s" % (v(d + k), v(r + 2 * k), v(r + 2 * k + 1)))

    for i in range(16):
        A.need("r%d" % i)
        combine(i, RX + 4 * i)
        A.lds("ds_read_b128 %s, v7 offset:%d" % (v(RX + 4 * i, 4), XS(16 + i)), "r%d" % (16 + i))
    A.lds_drain()
    A.e("s_barrier")
    OP = Phase("o", 16, S_WO, S_WO, V_OFF_O, V_OFF_O + 4, 896, 0)
    so = Stream(A, [OP], NS_O, 0, tail_swap=True)
    A.vm_q = []
    dq2 = [op for h in range(so.lead) for op in so.dma_ops(h)]

    def owrite(i):
        rt, p = i >> 3, (i & 7) >> 1
        A.lds("ds_write_b128 v10, %s offset:%d" % (v(128 + 4 * (i & ~1), 4), p * 4096 + rt * 256), "ow")

    for i in range(16, 32):
        pre, ld, tag = dq2.pop(0)
        for t in pre:
            A.e(t)
        if i < 24:
            owrite(2 * (i - 16) + 1)
        else:
            A.e("s_nop 0")
        A.vm(ld, tag)
        combine(i, RX + 4 * (i - 16))
        if i & 1:
            owrite(i)
    assert not dq2
    so.first_a()
    A.need("ow")
    A.e("s_barrier")
    so.first_b(0)
    stamp()
    pops = []

    def early_stores():
        pops.extend(partial_ops(A, PS_OFF, S_WS, 100, 101, staux))
        cv, stores = pops
        it = []
        for k in range(8):
            it += cv[4 * k:4 * k + 4]
            while stores[0][0] == "s":
                it.append(stores.pop(0))
            it.append(stores.pop(0))
        return Fill(it, spacing=3)

    so.run_phase("o", extra={-2: early_stores})
    so.last_fill.flush(A)
    stamp()
    A.e("s_nop 4")
    cv, stores = pops
    for k in range(8, 16):
        for it in cv[4 * k:4 * k + 4]:
            A.e(it[1])
        while stores[0][0] == "s":
            A.e(stores.pop(0)[1])
        A.e(stores.pop(0)[1])
    if fused:
        fused_tail(A, o, stamp)
    if o.get("stamps"):
        A.e("s_waitcnt vmcnt(0)")
        stamp(True)
        A.e("s_memrealtime s[98:99]")
        A.e("s_waitcnt lgkmcnt(0)")
        A.e("v_writelane_b32 v35, s100, 30")
        A.e("v_writelane_b32 v35, s98, 31")
        A.e("s_lshl_b32 s27, s2, 2")
        A.e("s_add_u32 s27, s27, %s" % s(S_W))
        A.e("s_lshl_b32 s27, s27, 8")
        A.e("s_add_u32 s27, s27, 0x4000000")
        A.e("v_lshlrev_b32 v2, 2, v0")
        A.e("buffer_store_dword v35, v2, %s, s27 offen" % s(S_WS, 4))
    A.label("L_done")
    A.e("s_endpgm")
    A.label("L_hot_end")
    if fused:
        A.label("L_sig")
        A.e("s_lshl_b32 s27, %s, 2" % s(S_RB))
        A.e("s_cmp_eq_u32 %s, 0" % s(S_CNT))
        A.e("s_cbranch_scc1 L_sig0")
        A.e("buffer_load_dword %s, off, %s, s27 sc1" % (v(V_POLL), s(S_DBG, 4)))
        A.e("s_branch L_sigback")
        A.label("L_sig0")
        A.e("s_cmp_lg_u32 %s, 0" % s(S_W))
        A.e("s_cbranch_scc1 L_sigback")
        A.e("v_mov_b32 v6, 1")
        A.e("s_mov_b64 exec, 1")
        A.e("buffer_atomic_add v6, off, %s, s27 sc1" % s(S_DBG, 4))
        A.e("s_mov_b64 exec, -1")
        A.e("s_branch L_sigback")
        A.label("L_spinD")
        A.e("s_mov_b32 s28, 0")
        A.e("s_lshl_b32 s27, %s, 2" % s(S_RB))
        A.label("L_spinD1")
        A.e("s_sleep 4")
        A.e("buffer_load_dword %s, off, %s, s27 sc1" % (v(V_POLL), s(S_DBG, 4)))
        A.e("s_add_u32 s28, s28, 1")
        A.e("s_waitcnt vmcnt(0)")
        A.e("v_readfirstlane_b32 s29, %s" % v(V_POLL))
        A.e("s_cmp_gt_u32 s28, 0x100000")
        A.e("s_cbranch_scc1 L_okD")
        A.e("s_cmp_eq_u32 s29, 8")
        A.e("s_cbranch_scc0 L_spinD1")
        A.e("s_branch L_okD")
    at.rare_paths()


def gen_reduce(A, o):
    A.raw(kernel_header(KRED))
    A.e("s_cmp_ge_u32 s2, 448")
    A.e("s_cbranch_scc1 L_rdone")
    A.e("s_load_dwordx2 s[4:5], s[0:1], 0")
    A.e("s_load_dwordx2 s[8:9], s[0:1], 72")
    A.e("s_load_dwordx2 s[12:13], s[0:1], 88")
    A.e("s_mul_hi_u32 s16, s2, %d" % ((2 ** 32 + 13) // 14))
    A.e("s_mul_i32 s17, s16, 14")
    A.e("s_sub_u32 s17, s2, s17")
    A.e("s_mul_i32 s18, s16, %d" % PART)
    A.e("s_lshl_b32 s19, s17, 12")
    A.e("s_add_u32 s18, s18, s19")
    A.e("v_lshlrev_b32 v1, 4, v0")
    A.e("v_lshrrev_b32 v2, 6, v0")
    A.e("v_and_b32 v3, 15, v0")
    A.e("v_lshl_add_u32 v2, v2, 4, v3")
    A.e("v_mul_u32_u24 v2, 896, v2")
    A.e("v_bfe_u32 v3, v0, 4, 2")
    A.e("v_lshl_add_u32 v2, v3, 3, v2")
    A.e("s_mul_i32 s20, s16, %d" % (64 * 896))
    A.e("s_lshl_b32 s21, s17, 6")
    A.e("s_add_u32 s20, s20, s21")
    A.e("s_waitcnt lgkmcnt(0)")
    A.e("s_mov_b32 s6, %d" % (2048 * 896))
    A.e("s_mov_b32 s7, 0x20000")
    A.e("s_mov_b32 s10, %d" % (2048 * 896))
    A.e("s_mov_b32 s11, 0x20000")
    A.e("s_mov_b32 s14, 0x10000000")
    A.e("s_mov_b32 s15, 0x20000")
    R = 8
    A.e("s_add_u32 s19, s18, %d" % PD_OFF)
    for g in range(7):
        A.vm("buffer_load_dwordx4 %s, v1, s[12:15], s19 offen" % v(R + 4 * g, 4), "d%d" % g)
        A.e("s_add_u32 s19, s19, %d" % (32 * PART))
    A.e("s_add_u32 s19, s18, %d" % PS_OFF)
    for g in range(8):
        A.vm("buffer_load_dwordx4 %s, v1, s[12:15], s19 offen" % v(R + 28 + 4 * g, 4), "s%d" % g)
        A.e("s_add_u32 s19, s19, %d" % (32 * PART))
    A.vm("buffer_load_dwordx2 v[4:5], v2, s[4:7], s20 offen", "x")
    A.vm("buffer_load_dwordx2 v[6:7], v2, s[4:7], s20 offen offset:32", "x")
    A.e("s_mov_b32 s31, 0xffff0000")

    def ns(g):
        A.vneed("s%d" % g)
        if g == 7:
            A.vneed("x")
    final_math(A, R, R + 28, 4, 68, 76, 84, lambda g: A.vneed("d%d" % g), ns)
    A.e("buffer_store_dwordx2 v[4:5], v2, s[8:11], s20 offen")
    A.e("buffer_store_dwordx2 v[6:7], v2, s[8:11], s20 offen offset:32")
    A.label("L_rdone")
    A.e("s_endpgm")


HEADER = open("cdna_kernels/%s.s.ref" % BASE).read().split("; Override launch")[0]


def gen(o):
    A = Asm()
    A.raw(HEADER.rstrip())
    fused = o.get("fused", 1)
    if fused:
        A.raw("; @launch grid=(256,1,1) block=(256,1,1) lds=163840")
    else:
        A.raw("; @launch kernel=%s grid=(256,1,1) block=(256,1,1) lds=163840" % KMAIN)
        if not o.get("nored"):
            A.raw("; @launch kernel=%s grid=(448,1,1) block=(256,1,1) lds=0" % KRED)
    A.raw('.amdgcn_target "amdgcn-amd-amdhsa--gfx950"')
    A.raw(".text")
    gen_main(A, o)
    A.vm_q = []
    A.lds_q = []
    if not fused:
        gen_reduce(A, o)
    A.raw('.section .rodata,"a"')
    A.raw(".p2align 6")
    A.raw(kernel_desc(KMAIN, 512, 256))
    if not fused:
        A.raw(".p2align 6")
        A.raw(kernel_desc(KRED, 96, 96, sgpr=32))
    return A.text()


if __name__ == "__main__":
    o = json.loads(sys.argv[2]) if len(sys.argv) > 2 else {}
    open(sys.argv[1], "w").write(gen(o))
```

```python
import sys, json
from asmlib import *
from attn16 import *

BASE = "recurrent_scan__gqa_block_cached__glu_gated_bilinear__prompt"
KMAIN = BASE + "_kernel"
KRED = "final_reduce_kernel"

HS = 4 * CH
RING_P, NS_P = 57344, 6
RING_O, NS_O = 65536, 5
ML_BASE = 98304
SIGMA = 5

V_FA = 16
V_FB = 36
V_H = 68
V_OFF_GU = 100
V_OFF_Q = 104
V_OFF_D = 112
V_WA, V_BA = 120, 121
V_ST = 122
V_OFF_O = 104
S_W, S_HH, S_KH, S_G, S_RB = 16, 17, 18, 19, 20
S_WS = 12
S_X, S_WG, S_WU, S_WQ, S_WD, S_WO = 32, 36, 40, 44, 48, 52
S_RING, S_SO = 60, 61
S_WSD = 32
V_ST2 = 123
S_STAMP = 64
PD_OFF, PS_OFF = 0, 0x1000000
PART = 56 * 1024
FL_OFF = 0x3000000
S_DBG, S_OUT, S_X2 = 36, 40, 44
V_POLL = 46
V_PO, V_XO = (1, 3), (4, 33)
QSCALE = 1.4426950408889634 / 16.0


def fbits(x):
    import struct
    return "0x%08x" % struct.unpack("<I", struct.pack("<f", x))[0]


def ACC(t, rt):
    return 128 + (t * 4 + rt) * 4


class Phase:
    def __init__(self, name, nk, srd0, srd1, off0, off1, stride, act):
        self.name, self.nk, self.srd, self.off, self.stride, self.act = name, nk, (srd0, srd1), (off0, off1), stride, act


class Stream:
    def __init__(self, A, phases, ns, sigma, tail_swap=False):
        self.A, self.ns, self.sigma = A, ns, sigma
        self.hs = []
        gk = 0
        for ph in phases:
            for ks in range(ph.nk):
                for cb in range(2):
                    self.hs.append((ph, ks, cb, gk))
                gk += 1
        if tail_swap:
            self.hs[-3], self.hs[-2] = self.hs[-2], self.hs[-3]
        self.lead = ns - 1
        self.pend = []
        self.b_loaded = set()
        self.cur_so = None

    def slot(self, h):
        return ((h + self.sigma) % self.ns) * HS

    def dma_ops(self, h):
        if h >= len(self.hs):
            return []
        ph, ks, cb, gk = self.hs[h]
        out = []
        for c in range(4):
            pre = []
            if c == 0 and self.cur_so != ks * 32 * ph.stride:
                self.cur_so = ks * 32 * ph.stride
                pre.append("s_mov_b32 %s, %d" % (s(S_SO), self.cur_so))
            pre.append("s_add_u32 m0, %s, %d" % (s(S_RING), self.slot(h) + c * CH))
            ld = "buffer_load_dwordx4 %s, %s, %s offen lds" % (v(ph.off[cb] + c), s(ph.srd[cb], 4), s(S_SO))
            out.append((pre, ld, "w%d" % h))
        return out

    def issue_initial(self):
        for h in range(self.lead):
            for pre, ld, tag in self.dma_ops(h):
                for t in pre:
                    self.A.e(t)
                self.A.e("s_nop 0")
                self.A.vm(ld, tag)

    def a_reads(self, h, x):
        if h >= len(self.hs):
            return []
        return [("ds_read_b64_tr_b16 %s, %s offset:%d" % (v(V_FA + 4 * x + 2 * u, 2), v(V_WA), self.slot(h) + x * 32 + u * 512),
                 "a%d_%d" % (h, x)) for u in range(2)]

    def b_reads(self, ph, ks, gk):
        return [("ds_read_b128 %s, %s offset:%d" % (v(V_FB + 16 * (gk & 1) + 4 * rt, 4), v(V_BA), ph.act + ks * 4096 + rt * 256),
                 "b%d" % gk) for rt in range(4)]

    def first_a(self):
        A = self.A
        A.vneed("w0")
        for x in range(4):
            for t, tag in self.a_reads(0, x):
                A.lds(t, tag)

    def first_b(self, h):
        ph, ks, cb, gk = self.hs[h]
        self.b_loaded.add(gk)
        for t, tag in self.b_reads(ph, ks, gk):
            self.A.lds(t, tag)

    def period(self, h, extra=None, b_next=True):
        A = self.A
        ph, ks, cb, gk = self.hs[h]
        dm = self.dma_ops(h + self.lead)
        br = []
        if b_next and h + 1 < len(self.hs) and self.hs[h + 1][3] not in self.b_loaded:
            nph, nks, _, ngk = self.hs[h + 1]
            br = self.b_reads(nph, nks, ngk)
            self.b_loaded.add(ngk)
        for i in range(16):
            x, rt = i >> 2, i & 3
            if rt == 0:
                if x == 0:
                    A.need("b%d" % gk)
                A.need("a%d_%d" % (h, x))
            acc = v(ACC(4 * cb + x, rt), 4)
            A.e("%s %s, %s, %s, %s" % (MF, acc, v(V_FA + 4 * x, 4), v(V_FB + 16 * (gk & 1) + 4 * rt, 4), acc if ks else "0"))
            free = 2
            if rt == 3:
                if x == 0:
                    A.vneed("w%d" % (h + 1))
                self.pend += self.a_reads(h + 1, x)
            if self.pend:
                t, tag = self.pend.pop(0)
                A.lds(t, tag)
                free -= 1
            if rt == 0 and dm:
                for t in dm[x][0]:
                    A.e(t)
            if rt == 1 and dm:
                A.vm(dm[x][1], dm[x][2])
                free -= 1
            if rt == 2 and br:
                t, tag = br[x]
                A.lds(t, tag)
                free -= 1
            if extra:
                extra.gap(A, free)

    def flush_pend(self):
        for t, tag in self.pend:
            self.A.lds(t, tag)
        self.pend = []

    def run_phase(self, name, extra=None, b_next_last=True):
        idx = [h for h, e in enumerate(self.hs) if e[0].name == name]
        ex = None
        for n, h in enumerate(idx):
            for key in (n, n - len(idx)):
                if extra and key in extra:
                    ex = extra[key]()
            self.period(h, ex, b_next=(b_next_last or h != idx[-1]))
        self.last_fill = ex
        self.flush_pend()
        return idx[-1] + 1


def make_srd(A, sreg, karg_reg, size, off_sreg=None, zero_if_g7=False):
    if off_sreg is not None:
        A.e("s_add_u32 %s, %s, %s" % (s(sreg), s(sreg), s(off_sreg)))
        A.e("s_addc_u32 %s, %s, 0" % (s(sreg + 1), s(sreg + 1)))
        A.e("s_sub_u32 %s, %d, %s" % (s(sreg + 2), size, s(off_sreg)))
    else:
        A.e("s_mov_b32 %s, %d" % (s(sreg + 2), size))
    if zero_if_g7:
        A.e("s_cmp_eq_u32 %s, 7" % s(S_G))
        A.e("s_cselect_b32 %s, 0, %s" % (s(sreg + 2), s(sreg + 2)))
    A.e("s_mov_b32 %s, 0x20000" % s(sreg + 3))


def voffsets(A, dst0, dst1, stride, natural, colshift, t0, oob_w3):
    t1, t2 = t0 + 1, t0 + 2
    A.e("v_bfe_u32 %s, v0, 3, 1" % v(t0))
    A.e("v_bfe_u32 %s, v0, 4, 1" % v(t1))
    A.e("v_lshl_add_u32 %s, %s, %d, %s" % (v(t0), v(t1), 4 if natural else 3, v(t0)))
    A.e("v_lshrrev_b32 %s, 5, v0" % v(t1))
    A.e("v_lshl_add_u32 %s, %s, %d, %s" % (v(t0), v(t1), 2 if natural else 4, v(t0)))
    A.e("v_mul_u32_u24 %s, %d, %s" % (v(t0), stride, v(t0)))
    A.e("v_and_b32 %s, 7, v0" % v(t1))
    A.e("v_lshl_add_u32 %s, %s, 4, %s" % (v(t0), v(t1), v(t0)))
    A.e("s_lshl_b32 s27, %s, %d" % (s(S_W), colshift))
    A.e("v_add_u32 %s, s27, %s" % (v(dst0), v(t0)))
    for c in range(1, 4):
        g0, r1 = c >> 1, c & 1
        rows = (8 if natural else 4) * g0 + 2 * r1
        A.e("v_add_u32 %s, %d, %s" % (v(dst0 + c), rows * stride, v(dst0)))
    if dst1 is not None:
        if oob_w3:
            A.e("s_cmp_eq_u32 %s, 3" % s(S_W))
            A.e("s_cselect_b32 s27, 0x40000000, 128")
        else:
            A.e("s_mov_b32 s27, 128")
        for c in range(4):
            A.e("v_add_u32 %s, s27, %s" % (v(dst1 + c), v(dst0 + c)))


def wa_lane(A, dst, t0):
    A.e("v_bfe_u32 %s, v0, 3, 2" % v(t0))
    A.e("v_mul_u32_u24 %s, %d, %s" % (v(dst), CH, v(t0)))
    A.e("v_bfe_u32 %s, v0, 2, 1" % v(t0))
    A.e("v_lshl_add_u32 %s, %s, 7, %s" % (v(dst), v(t0), v(dst)))
    A.e("v_lshrrev_b32 %s, 5, v0" % v(t0))
    A.e("v_lshl_add_u32 %s, %s, 8, %s" % (v(dst), v(t0), v(dst)))
    A.e("v_and_b32 %s, 3, v0" % v(t0))
    A.e("v_lshl_add_u32 %s, %s, 3, %s" % (v(dst), v(t0), v(dst)))


def xreduce(A, op, r, tmp):
    for sw in ("v_permlane16_swap_b32", "v_permlane32_swap_b32"):
        A.e("v_mov_b32 %s, %s" % (v(tmp), v(r)))
        A.e("s_nop 1")
        A.e("%s %s, %s" % (sw, v(tmp), v(r)))
        A.e("s_nop 1")
        A.e("%s %s, %s, %s" % (op, v(r), v(r), v(tmp)))


def round_bf16(A, r):
    A.e("v_cvt_pk_bf16_f32 %s, %s, %s" % (v(r), v(r), v(r)))
    A.e("v_lshlrev_b32 %s, 16, %s" % (v(r), v(r)))


def partial_ops(A, base_off, srd, vst, vst2, aux):
    A.e("s_lshl_b32 s27, %s, 5" % s(S_G))
    A.e("s_add_u32 s27, s27, %s" % s(S_RB))
    A.e("s_mul_i32 s27, s27, %d" % PART)
    A.e("s_lshl_b32 s28, %s, 14" % s(S_W))
    A.e("s_add_u32 s27, s27, s28")
    A.e("s_add_u32 s30, s27, %d" % base_off)
    A.e("v_lshlrev_b32 %s, 4, v0" % v(vst))
    A.e("s_cmp_eq_u32 %s, 3" % s(S_W))
    A.e("s_cselect_b32 s27, 0x40000000, 0")
    A.e("v_add_u32 %s, s27, %s" % (v(vst2), v(vst)))
    cv, stores = [], []
    for tp in range(4):
        for rt in range(4):
            d = ACC(2 * tp, rt)
            for k in range(2):
                r = ACC(2 * tp + k, rt)
                cv.append(("v", "v_cvt_pk_bf16_f32 %s, %s, %s" % (v(d + 2 * k), v(r), v(r + 1))))
                cv.append(("v", "v_cvt_pk_bf16_f32 %s, %s, %s" % (v(d + 2 * k + 1), v(r + 2), v(r + 3))))
            if rt == 0 and tp:
                stores.append(("s", "s_add_u32 s30, s30, 4096"))
            stores.append(("m", "buffer_store_dwordx4 %s, %s, %s, s30 offen offset:%d %s" % (
                v(d, 4), v(vst if tp < 2 else vst2), s(srd, 4), rt * 1024, aux)))
    return cv, stores


def final_math(A, D, S, X, DA, SA, T, need_d, need_s, nd=7, part=0):
    def accum(acc, src, first):
        for k in range(4):
            if first:
                A.e("v_lshlrev_b32 %s, 16, %s" % (v(acc + 2 * k), v(src + k)))
                A.e("v_and_b32 %s, s31, %s" % (v(acc + 2 * k + 1), v(src + k)))
            else:
                A.e("v_lshlrev_b32 %s, 16, %s" % (v(T + 2 * (k & 1)), v(src + k)))
                A.e("v_and_b32 %s, s31, %s" % (v(T + 2 * (k & 1) + 1), v(src + k)))
                A.e("v_pk_add_f32 %s, %s, %s" % (v(acc + 2 * k, 2), v(acc + 2 * k, 2), v(T + 2 * (k & 1), 2)))

    def rnd(r):
        for k in range(4):
            A.e("v_cvt_pk_bf16_f32 %s, %s, %s" % (v(T + k), v(r + 2 * k), v(r + 2 * k + 1)))
        for k in range(4):
            A.e("v_lshlrev_b32 %s, 16, %s" % (v(r + 2 * k), v(T + k)))
            A.e("v_and_b32 %s, s31, %s" % (v(r + 2 * k + 1), v(T + k)))

    if part in (0, 1):
        for g in range(nd):
            need_d(g)
            accum(DA, D + 4 * g, g == 0)
        for k in range(8):
            A.e("v_mul_f32 %s, %s, %s" % (v(DA + k), fbits(1.0 / (QSCALE * QSCALE)), v(DA + k)))
        rnd(DA)
        for k in range(8):
            A.e("v_mul_f32 %s, %s, %s" % (v(T + k), fbits(-1.4426950408889634), v(DA + k)))
        for k in range(8):
            A.e("v_exp_f32 %s, %s" % (v(T + k), v(T + k)))
        for k in range(8):
            A.e("v_add_f32 %s, 1.0, %s" % (v(T + k), v(T + k)))
        for k in range(8):
            A.e("v_rcp_f32 %s, %s" % (v(T + k), v(T + k)))
        for k in range(8):
            A.e("v_mul_f32 %s, %s, %s" % (v(DA + k), v(DA + k), v(T + k)))
        rnd(DA)
    if part in (0, 2):
        for g in range(8):
            need_s(g)
            accum(SA, S + 4 * g, g == 0)
        rnd(SA)
        for k in range(4):
            A.e("v_pk_mul_f32 %s, %s, %s" % (v(SA + 2 * k, 2), v(SA + 2 * k, 2), v(DA + 2 * k, 2)))
        rnd(SA)
        for k in range(4):
            A.e("v_lshlrev_b32 %s, 16, %s" % (v(T + 2 * k), v(X + k)))
            A.e("v_and_b32 %s, s31, %s" % (v(T + 2 * k + 1), v(X + k)))
        for k in range(4):
            A.e("v_pk_add_f32 %s, %s, %s" % (v(SA + 2 * k, 2), v(SA + 2 * k, 2), v(T + 2 * k, 2)))
        for k in range(4):
            A.e("v_cvt_pk_bf16_f32 %s, %s, %s" % (v(X + k), v(SA + 2 * k), v(SA + 2 * k + 1)))


def tail_addresses(A):
    A.e("s_mul_i32 s26, %s, 7" % s(S_G))
    A.e("s_add_u32 s26, s26, %s" % s(S_W))
    A.e("v_lshlrev_b32 v6, 4, v0")
    A.e("v_and_b32 v7, 15, v0")
    A.e("v_mul_u32_u24 v7, 896, v7")
    A.e("v_lshrrev_b32 v8, 4, v0")
    A.e("v_lshl_add_u32 v7, v8, 3, v7")
    for c in range(2):
        if c:
            A.e("s_add_u32 s26, s26, 4")
        A.e("s_lshl_b32 s27, s26, 10")
        A.e("s_and_b32 s28, s26, 3")
        A.e("s_mul_i32 s28, s28, %d" % (16 * 896))
        A.e("s_lshr_b32 s29, s26, 2")
        A.e("s_lshl_b32 s29, s29, 6")
        A.e("s_add_u32 s28, s28, s29")
        if c:
            A.e("s_cmp_eq_u32 %s, 3" % s(S_W))
            A.e("s_cselect_b32 s27, 0x40000000, s27")
            A.e("s_cselect_b32 s28, 0x40000000, s28")
        A.e("v_add_u32 %s, s27, v6" % v(V_PO[c]))
        A.e("v_add_u32 %s, s28, v7" % v(V_XO[c]))
    A.e("s_mul_i32 s24, %s, %d" % (s(S_RB), PART))
    A.e("s_mul_i32 s25, %s, %d" % (s(S_RB), 64 * 896))
    A.e("v_readfirstlane_b32 s29, %s" % v(V_POLL))
    A.e("s_cmp_ge_u32 s29, 8")
    A.e("s_cbranch_scc0 L_spinD")
    A.label("L_okD")


def fused_tail(A, o, stamp):
    DR, XR, DA, SA, T = 36, 24, (8, 104), 92, 112
    A.e("s_mov_b32 s31, 0xffff0000")
    A.e("s_lshl_b32 s26, %s, 10" % s(S_RB))
    A.e("s_add_u32 s26, s26, %d" % FL_OFF)
    A.e("s_lshl_b32 s27, %s, 7" % s(S_G))
    A.e("s_add_u32 s27, s27, s26")
    A.e("v_mov_b32 v5, 1")
    A.e("v_lshlrev_b32 v2, 7, v0")

    def dmath(c):
        for k in range(28):
            A.e("v_accvgpr_read_b32 %s, %s" % (v(DR + k), a(32 * c + k)))
        for k in range(4):
            A.e("v_accvgpr_read_b32 %s, %s" % (v(XR + 4 * c + k), a(32 * c + 28 + k)))
        final_math(A, DR, None, None, DA[c], None, T, lambda g: None, None, part=1)

    dmath(0)
    A.e("s_waitcnt vmcnt(0)")
    A.e("s_barrier")
    stamp()
    A.e("s_cmp_lg_u32 %s, 0" % s(S_W))
    A.e("s_cbranch_scc1 L_noflag")
    A.e("s_mov_b64 exec, 1")
    A.e("buffer_store_dword v5, off, %s, s27 sc1" % s(S_WS, 4))
    A.e("s_mov_b64 exec, 0xff")
    A.e("buffer_load_dword v6, v2, %s, s26 offen sc1" % s(S_WS, 4))
    A.e("s_mov_b64 exec, -1")
    A.label("L_noflag")
    dmath(1)
    A.e("s_cmp_lg_u32 %s, 0" % s(S_W))
    A.e("s_cbranch_scc1 L_flagok")
    A.e("s_mov_b32 s28, 0")
    A.e("s_mov_b64 exec, 0xff")
    A.label("L_spinS")
    A.e("s_add_u32 s28, s28, 1")
    A.e("s_waitcnt vmcnt(0)")
    A.e("v_cmp_ne_u32 vcc, 1, v6")
    A.e("s_cmp_gt_u32 s28, 0x8000")
    A.e("s_cbranch_scc1 L_spinS_end")
    A.e("s_cbranch_vccz L_spinS_end")
    if o.get("sleep", 1):
        A.e("s_sleep %d" % o.get("sleep", 1))
    A.e("buffer_load_dword v6, v2, %s, s26 offen sc1" % s(S_WS, 4))
    A.e("s_branch L_spinS")
    A.label("L_spinS_end")
    A.e("s_mov_b64 exec, -1")
    A.label("L_flagok")
    A.e("s_barrier")
    stamp()
    A.vm_q = []
    SR = 128
    for c in range(2):
        A.e("s_add_u32 s27, s24, %d" % PS_OFF)
        for g in range(8):
            A.vm("buffer_load_dwordx4 %s, %s, %s, s27 offen sc1" % (v(SR + 32 * c + 4 * g, 4), v(V_PO[c]), s(S_WS, 4)), "s%d_%d" % (c, g))
            if g < 7:
                A.e("s_add_u32 s27, s27, %d" % (32 * PART))
    for c in range(2):
        final_math(A, None, SR + 32 * c, XR + 4 * c, DA[c], SA, T, None,
                   lambda g, c=c: A.vneed("s%d_%d" % (c, g)), part=2)
        for k in range(2):
            A.vm("buffer_store_dwordx2 %s, %s, %s, s25 offen offset:%d" % (v(XR + 4 * c + 2 * k, 2), v(V_XO[c]), s(S_OUT, 4), 32 * k), "o")


def gen_main(A, o):
    nst = [0]
    fused = o.get("fused", 1)
    staux = "sc1" if fused else o.get("staux", "")

    def stamp(force=False):
        if o.get("stamps") == 1 or (force and o.get("stamps")):
            A.e("s_memtime s[96:97]")
            A.e("s_memrealtime s[98:99]")
            A.e("s_waitcnt lgkmcnt(0)")
            A.e("v_writelane_b32 v35, s96, %d" % nst[0])
            A.e("v_writelane_b32 v35, s98, %d" % (32 + nst[0]))
            A.lds_q = []
            nst[0] += 1

    A.raw(kernel_header(KMAIN))
    A.e("s_cmp_ge_u32 s2, 256")
    A.e("s_cbranch_scc1 L_done")
    if o.get("stamps"):
        A.e("s_memrealtime s[100:101]")
        A.e("v_mov_b32 v35, 0")
    stamp(True)
    A.e("s_load_dwordx2 %s, s[0:1], 0" % s(S_X, 2))
    A.e("s_load_dwordx2 %s, s[0:1], 48" % s(S_WG, 2))
    A.e("s_load_dwordx2 %s, s[0:1], 56" % s(S_WU, 2))
    A.e("s_load_dwordx2 %s, s[0:1], 24" % s(S_WQ, 2))
    A.e("s_load_dwordx2 %s, s[0:1], 64" % s(S_WD, 2))
    A.e("s_load_dwordx2 %s, s[0:1], 32" % s(S_WO, 2))
    A.e("s_load_dwordx2 %s, s[0:1], 8" % s(S_SRDK, 2))
    A.e("s_load_dwordx2 %s, s[0:1], 16" % s(S_SRDV, 2))
    A.e("s_load_dwordx2 %s, s[0:1], 88" % s(S_WS, 2))
    A.e("v_lshrrev_b32 v6, 6, v0")
    A.e("v_and_b32 v0, 63, v0")
    A.e("v_readfirstlane_b32 %s, v6" % s(S_W))
    A.e("s_and_b32 %s, s2, 7" % s(S_G))
    A.e("s_lshr_b32 %s, s2, 3" % s(S_RB))
    A.e("s_and_b32 %s, %s, 1" % (s(S_HH), s(S_W)))
    A.e("s_lshr_b32 %s, %s, 1" % (s(S_KH), s(S_W)))
    if o.get("cpf", 1):
        A.e("s_getpc_b64 s[28:29]")
        A.label("L_pc")
        A.e("s_lshl_b32 s27, %s, 2" % s(S_RB))
        A.e("s_add_u32 s27, s27, %s" % s(S_W))
        A.e("s_mul_i32 s27, s27, 5")
        A.e("v_add_u32 v10, s27, v0")
        A.e("v_min_u32 v10, (L_hot_end - L_pc) / 128, v10")
        A.e("v_lshlrev_b32 v10, 7, v10")
        A.e("v_mov_b32 v11, s29")
        A.e("v_add_co_u32 v10, vcc, s28, v10")
        A.e("s_nop 1")
        A.e("v_addc_co_u32 v11, vcc, 0, v11, vcc")
        A.e("s_mov_b64 exec, 0x1f")
        A.vm("global_load_dword %s, v[10:11], off" % v(V_DUM), "pf")
        A.e("s_mov_b64 exec, -1")
    A.e("v_and_b32 v7, 15, v0")
    A.e("v_lshrrev_b32 v8, 4, v0")
    A.e("v_mul_u32_u24 v9, 896, v7")
    A.e("v_lshl_add_u32 v9, v8, 4, v9")
    A.e("s_lshl_b32 s27, %s, 2" % s(S_RB))
    A.e("s_add_u32 s27, s27, %s" % s(S_W))
    A.e("s_mul_i32 s30, s27, %d" % (16 * 896))
    A.e("v_lshlrev_b32 %s, 4, v7" % v(V_BA))
    A.e("v_lshl_add_u32 %s, v8, 10, %s" % (v(V_BA), v(V_BA)))
    A.e("v_lshlrev_b32 %s, 4, v0" % v(V_ST))
    voffsets(A, V_OFF_GU, None, 3584, True, 7, 10, False)
    A.e("s_mul_i32 %s, %s, %d" % (s(S_RING), s(S_W), NS_P * HS))
    A.e("s_add_u32 %s, %s, %d" % (s(S_RING), s(S_RING), RING_P))
    A.e("s_waitcnt lgkmcnt(0)")
    if o.get("fine"): stamp()
    make_srd(A, S_X, None, 2048 * 896)
    RAW = 36
    for t in range(14):
        A.vm("buffer_load_dwordx4 %s, v9, %s, s30 offen offset:%d" % (v(RAW + 4 * t, 4), s(S_X, 4), t * 64), "x%d" % t)
    A.e("s_lshl_b32 s29, %s, 9" % s(S_G))
    make_srd(A, S_WG, None, 448 * 3584, 29, True)
    make_srd(A, S_WU, None, 448 * 3584, 29, True)
    GU = Phase("gu", 14, S_WG, S_WU, V_OFF_GU, V_OFF_GU, 3584, 0)
    QP = Phase("q", 14, S_WQ, S_WQ, V_OFF_Q, V_OFF_Q + 4, 8192, 0)
    DP = Phase("d", 8, S_WD, S_WD, V_OFF_D, V_OFF_D + 4, 896, 0)
    st = Stream(A, [GU, QP, DP], NS_P, SIGMA)
    A.e("s_lshl_b32 s29, %s, 10" % s(S_G))
    make_srd(A, S_WQ, None, 448 * 8192, 29)
    A.e("s_mul_i32 s29, %s, %d" % (s(S_G), 256 * 896))
    make_srd(A, S_WD, None, 1792 * 896, 29, True)
    A.e("s_mul_i32 s29, %s, %d" % (s(S_G), 512 * 896))
    make_srd(A, S_WO, None, 4096 * 896, 29)
    def pf_gu():
        A.e("s_mul_i32 s27, %s, 14" % s(S_RB))
        A.e("v_add_u32 v10, s27, v0")
        A.e("v_mul_u32_u24 v11, 3584, v10")
        A.e("s_lshl_b32 s28, %s, 7" % s(S_W))
        A.e("s_mov_b64 exec, 0x3fff")
        A.vm("buffer_load_dword %s, v11, %s, s28 offen" % (v(V_DUM), s(S_WG, 4)), "pf")
        A.vm("buffer_load_dword %s, v11, %s, s28 offen" % (v(V_DUM), s(S_WU, 4)), "pf")
        A.e("s_mov_b64 exec, -1")

    def pf_q():
        A.e("s_mul_i32 s27, %s, 14" % s(S_RB))
        A.e("v_lshrrev_b32 v13, 1, v0")
        A.e("v_add_u32 v13, s27, v13")
        A.e("v_lshlrev_b32 v13, 13, v13")
        A.e("v_and_b32 v14, 1, v0")
        A.e("v_lshl_add_u32 v13, v14, 7, v13")
        A.e("s_lshl_b32 s28, %s, 8" % s(S_W))
        A.e("s_mov_b64 exec, 0xfffffff")
        A.vm("buffer_load_dword %s, v13, %s, s28 offen" % (v(V_DUM), s(S_WQ, 4)), "pf")
        A.e("s_mov_b64 exec, -1")

    def pf_d():
        A.e("s_lshl_b32 s27, %s, 2" % s(S_RB))
        A.e("s_add_u32 s27, s27, %s" % s(S_W))
        A.e("s_mul_i32 s28, s27, %d" % (14 * 128))
        A.e("v_lshlrev_b32 v13, 7, v0")
        A.e("s_mov_b64 exec, 0x3fff")
        A.vm("buffer_load_dword %s, v13, %s, s28 offen" % (v(V_DUM), s(S_WD, 4)), "pf")
        A.e("s_mov_b64 exec, -1")

    pfq, pfd = o.get("pfq", "ln"), o.get("pfd", "e1")
    if o.get("pf", 1):
        pf_gu()
        if pfq == "start":
            pf_q()
        if pfd == "start":
            pf_d()
    voffsets(A, V_OFF_Q, V_OFF_Q + 4, 8192, True, 8, 10, False)
    voffsets(A, V_OFF_D, V_OFF_D + 4, 896, False, 8, 10, True)
    wa_lane(A, V_WA, 10)
    A.e("v_add_u32 %s, %s, %s" % (v(V_WA), s(S_RING), v(V_WA)))
    A.e("s_lshl_b32 s27, %s, 20" % s(S_G))
    A.e("s_lshl_b32 s28, %s, 19" % s(S_KH))
    A.e("s_add_u32 s29, s27, s28")
    make_srd(A, S_SRDK, None, 0x800000, 29)
    make_srd(A, S_SRDV, None, 0x800000, 29)
    A.e("s_mov_b32 %s, 0x80000" % s(S_SRDK + 2))
    A.e("s_mov_b32 %s, 0x80000" % s(S_SRDV + 2))
    A.e("s_mov_b32 %s, 0x10000000" % s(S_WS + 2))
    A.e("s_mov_b32 %s, 0x20000" % s(S_WS + 3))
    if fused:
        A.e("s_lshl_b32 s27, %s, 3" % s(S_RB))
        A.e("s_add_u32 s27, s27, %s" % s(S_G))
        A.e("s_lshl_b32 s27, s27, 7")
        A.e("s_add_u32 s27, s27, %d" % FL_OFF)
        A.e("v_mov_b32 v10, 0")
        A.e("s_mov_b64 exec, 1")
        A.vm("buffer_store_dword v10, v10, %s, s27 offen sc1" % s(S_WS, 4), "fl")
        A.e("s_mov_b64 exec, -1")
    A.e("s_cmp_eq_u32 %s, 0" % s(S_HH))
    A.e("s_cselect_b32 %s, %s, %s" % (s(S_SRDPF), s(S_SRDK), s(S_SRDV)))
    A.e("s_cselect_b32 %s, %s, %s" % (s(S_SRDPF + 1), s(S_SRDK + 1), s(S_SRDV + 1)))
    A.e("s_mov_b32 %s, 0x80000" % s(S_SRDPF + 2))
    A.e("s_mov_b32 %s, 0x20000" % s(S_SRDPF + 3))
    at = Attn(A, o.get("attn"))
    at.setup_addresses(S_HH, S_KH, 0, 10)
    for t in at.m0_setup() + at.offsets_init():
        A.e(t)
    A.e("s_mov_b32 %s, %s" % (s(S_WSD), s(S_WS)))
    A.e("s_mov_b32 %s, %s" % (s(S_WSD + 1), s(S_WS + 1)))
    A.e("s_cmp_eq_u32 %s, 7" % s(S_G))
    A.e("s_cselect_b32 %s, 0, %s" % (s(S_WSD + 2), s(S_WS + 2)))
    A.e("s_mov_b32 %s, 0x20000" % s(S_WSD + 3))
    A.e("s_lshl_b32 s27, %s, 9" % s(S_RB))
    A.e("v_lshlrev_b32 v10, 7, v0")
    A.e("v_add_u32 v10, s27, v10")
    A.e("v_mov_b32 v11, 0x40000000")
    A.e("v_cmp_gt_u32 vcc, 4, v0")
    A.e("s_nop 1")
    A.e("v_cndmask_b32 %s, v11, v10, vcc" % v(V_PF))
    A.e("s_mov_b32 %s, %d" % (s(S_PFO), 8 * 16384))

    D0 = 128
    A.e("s_mov_b32 s31, 0xffff0000")
    if o.get("fine"): stamp()
    dq = [op for h in range(st.lead) for op in st.dma_ops(h)]
    cnt = [0]

    def ln(t, every=o.get("lnevery", 10)):
        A.e(t)
        cnt[0] += 1
        if cnt[0] < o.get("lnstart", 160):
            return
        if dq and cnt[0] % every == every - 2:
            for p in dq[0][0]:
                A.e(p)
        if dq and cnt[0] % every == every - 1:
            pre, ld, tag = dq.pop(0)
            A.vm(ld, tag)

    for k in range(56):
        if k % 4 == 0:
            A.vneed("x%d" % (k // 4))
            if k == 0:
                stamp()
        ln("v_lshlrev_b32 %s, 16, %s" % (v(D0 + 2 * k), v(RAW + k)))
        ln("v_and_b32 %s, s31, %s" % (v(D0 + 2 * k + 1), v(RAW + k)))
        if k >= 2:
            if k == 2:
                ln("v_pk_add_f32 v[6:7], %s, %s" % (v(D0, 2), v(D0 + 2, 2)))
            else:
                ln("v_pk_add_f32 v[6:7], v[6:7], %s" % v(D0 + 2 * (k - 1), 2))
    A.e("v_pk_add_f32 v[6:7], v[6:7], %s" % v(D0 + 110, 2))
    A.e("v_add_f32 v6, v6, v7")
    xreduce(A, "v_add_f32", 6, 7)
    A.e("v_mul_f32 v6, %s, v6" % fbits(1.0 / 448))
    A.e("v_mov_b32 v8, v6")
    round_bf16(A, 8)
    A.e("v_sub_f32 v12, v6, v8")
    for k in range(56):
        d = v(D0 + 2 * k, 2)
        ln("v_pk_add_f32 %s, %s, v[8:9] op_sel_hi:[1,0] neg_lo:[0,1] neg_hi:[0,1]" % (d, d))
        if k == 1:
            ln("v_pk_mul_f32 v[10:11], %s, %s" % (v(D0, 2), v(D0, 2)))
        elif k > 1:
            dp = v(D0 + 2 * (k - 1), 2)
            ln("v_pk_fma_f32 v[10:11], %s, %s, v[10:11]" % (dp, dp))
    A.e("v_pk_fma_f32 v[10:11], %s, %s, v[10:11]" % (v(D0 + 110, 2), v(D0 + 110, 2)))
    A.e("v_add_f32 v10, v10, v11")
    xreduce(A, "v_add_f32", 10, 11)
    A.e("v_mul_f32 v10, %s, v10" % fbits(1.0 / 448))
    A.e("v_fma_f32 v10, -v12, v12, v10")
    round_bf16(A, 10)
    A.e("v_add_f32 v10, %s, v10" % fbits(1e-5))
    round_bf16(A, 10)
    A.e("v_sqrt_f32 v10, v10")
    A.e("s_nop 0")
    round_bf16(A, 10)
    A.e("v_rcp_f32 v10, v10")
    A.e("s_lshl_b32 s27, %s, 8" % s(S_W))
    A.e("v_add_u32 v12, s27, %s" % v(V_BA))
    A.e("v_mul_f32 v10, %s, v10" % fbits(QSCALE))
    for t in range(14):
        for k in range(4 * t, 4 * t + 4):
            d = v(D0 + 2 * k, 2)
            ln("v_pk_mul_f32 %s, %s, v[10:11] op_sel_hi:[1,0]" % (d, d))
        for k in range(4 * t, 4 * t + 4):
            ln("v_cvt_pk_bf16_f32 %s, %s, %s" % (v(RAW + k), v(D0 + 2 * k), v(D0 + 2 * k + 1)))
        A.lds("ds_write_b128 v12, %s offset:%d" % (v(RAW + 4 * t, 4), t * 4096), "xw")
    assert not dq
    if pfq == "ln":
        pf_q()
    if pfd == "ln":
        pf_d()
    if o.get("fine"): stamp()
    st.first_a()
    A.need("xw")
    A.e("s_barrier")
    st.first_b(0)
    stamp()
    h = st.run_phase("gu")
    stamp()
    if pfd == "e1":
        pf_d()
    A.e("s_nop 7")
    for t in range(4):
        for rt in range(4):
            g_, u_ = ACC(t, rt), ACC(t + 4, rt)
            d = V_H + ((t >> 1) * 4 + rt) * 4 + 2 * (t & 1)
            for k in range(2):
                A.e("v_pk_mul_f32 %s, %s, %s" % (v(g_ + 2 * k, 2), v(g_ + 2 * k, 2), v(u_ + 2 * k, 2)))
            for k in range(2):
                A.e("v_cvt_pk_bf16_f32 %s, %s, %s" % (v(d + k), v(g_ + 2 * k), v(g_ + 2 * k + 1)))
    h = st.run_phase("q", b_next_last=False)
    stamp()
    if o.get("pf", 1):
        A.e("s_lshl_b32 s27, %s, 9" % s(S_RB))
        A.e("v_lshrrev_b32 v10, 2, v0")
        A.e("v_lshlrev_b32 v10, 14, v10")
        A.e("v_and_b32 v11, 3, v0")
        A.e("v_lshl_add_u32 v10, v11, 7, v10")
        if o.get("pfall"):
            A.vm("buffer_load_dword %s, v10, %s, s27 offen" % (v(V_DUM), s(S_SRDPF, 4)), "pf")
            A.e("s_add_u32 s27, s27, 0x40000")
            A.vm("buffer_load_dword %s, v10, %s, s27 offen" % (v(V_DUM), s(S_SRDPF, 4)), "pf")
        else:
            A.e("s_mov_b32 exec_hi, 0")
            A.vm("buffer_load_dword %s, v10, %s, s27 offen" % (v(V_DUM), s(S_SRDPF, 4)), "pf")
            A.e("s_mov_b64 exec, -1")
    A.e("v_and_b32 v10, 15, v0")
    A.e("v_lshlrev_b32 v10, 4, v10")
    A.e("v_lshrrev_b32 v11, 5, v0")
    A.e("v_lshl_add_u32 v10, v11, 10, v10")
    A.e("v_bfe_u32 v11, v0, 4, 1")
    A.e("v_lshl_add_u32 v10, v11, 3, v10")
    A.e("s_lshl_b32 s27, %s, 14" % s(S_W))
    A.e("v_add_u32 v10, s27, v10")
    if fused:
        A.e("s_load_dwordx2 %s, s[0:1], 80" % s(S_DBG, 2))
        A.e("s_load_dwordx2 %s, s[0:1], 72" % s(S_OUT, 2))
        A.e("s_load_dwordx2 %s, s[0:1], 0" % s(S_X2, 2))
    A.lds_drain()
    if fused:
        make_srd(A, S_DBG, None, 256)
        make_srd(A, S_OUT, None, 2048 * 896)
        make_srd(A, S_X2, None, 2048 * 896)
    A.e("s_barrier")
    for t in range(8):
        for rt in range(4):
            r = ACC(t, rt)
            for k in range(2):
                A.e("v_cvt_pk_bf16_f32 %s, %s, %s" % (v(r + k), v(r + 2 * k), v(r + 2 * k + 1)))
            A.lds("ds_write_b64 v10, %s offset:%d" % (v(r, 2), t * 2048 + rt * 256), "qw")
    A.e("s_lshl_b32 s27, %s, 15" % s(S_HH))
    A.e("v_add_u32 v11, s27, %s" % v(V_BA))
    A.lds_drain()
    A.e("s_barrier")
    for rt in range(4):
        for ks in range(8):
            A.e("ds_read_b128 %s, v11 offset:%d" % (a(Q(rt, ks), 4), ks * 4096 + rt * 256))
    A.e("s_lshl_b32 s27, %s, 13" % s(S_W))
    A.e("v_add_u32 v10, s27, %s" % v(V_BA))
    A.lds_drain()
    A.e("s_barrier")
    for p in range(2):
        for rt in range(4):
            A.e("ds_write_b128 v10, %s offset:%d" % (v(V_H + (p * 4 + rt) * 4, 4), p * 4096 + rt * 256))
    A.lds_drain()
    A.e("s_barrier")
    st.first_b(h)
    stamp()
    st.run_phase("d")
    stamp()
    A.lds_drain()
    A.e("s_barrier")
    Fill(at.fill_k(0)).flush(A)
    if o.get("pf", 1):
        A.e("s_lshl_b32 s27, %s, 2" % s(S_RB))
        A.e("s_add_u32 s27, s27, %s" % s(S_W))
        A.e("s_mul_i32 s28, s27, %d" % (28 * 128))
        A.e("v_lshlrev_b32 v11, 7, v0")
        A.e("s_mov_b64 exec, 0xfffffff")
        A.e("buffer_load_dword %s, v11, %s, s28 offen" % (v(V_DUM), s(S_WO, 4)))
        A.e("s_mov_b64 exec, -1")
    npf = 1 if o.get("pf", 1) else 0
    cv, stores = partial_ops(A, PD_OFF, S_WSD, 44, 45, staux)
    ncv = o.get("ncv_pre", 24)
    for it in cv[:ncv]:
        A.e(it[1])
    A.e("s_waitcnt vmcnt(%d)" % npf)
    A.vm_q = []
    A.e("s_barrier")
    stamp()
    T = 36
    XS = lambda i: ((i + 4) % 32) * 1024

    def last_fill():
        it = []
        for sw in ("v_permlane16_swap_b32", "v_permlane32_swap_b32"):
            it += [("v", "v_mov_b32 %s, %s" % (v(T + rt), v(V_L + rt))) for rt in range(4)]
            it += [("v", "%s %s, %s" % (sw, v(T + rt), v(V_L + rt))) for rt in range(4)]
            it += [("v", "v_add_f32 %s, %s, %s" % (v(V_L + rt), v(V_L + rt), v(T + rt))) for rt in range(4)]
        it += [("v", "v_mov_b32 %s, %s" % (v(T + 4 + rt), v(NM(rt)))) for rt in range(4)]
        B = Asm()
        B.e("v_lshlrev_b32 v11, 4, v0")
        B.e("s_add_u32 s27, %s, 1" % s(S_W))
        B.e("s_lshr_b32 s27, s27, 2")
        B.e("s_add_u32 s27, s27, %s" % s(S_W))
        B.e("s_lshl_b32 s27, s27, 15")
        B.e("v_add_u32 v6, s27, v11")
        B.e("s_xor_b32 s28, %s, 2" % s(S_W))
        B.e("s_add_u32 s27, s28, 1")
        B.e("s_lshr_b32 s27, s27, 2")
        B.e("s_add_u32 s27, s27, s28")
        B.e("s_lshl_b32 s27, s27, 15")
        B.e("v_add_u32 v7, s27, v11")
        B.e("v_and_b32 v11, 15, v0")
        B.e("v_lshlrev_b32 v11, 4, v11")
        B.e("s_lshl_b32 s27, %s, 9" % s(S_W))
        B.e("s_add_u32 s27, s27, %d" % ML_BASE)
        B.e("v_add_u32 v8, s27, v11")
        B.e("s_xor_b32 s28, s27, 0x400")
        B.e("v_add_u32 v9, s28, v11")
        for l in B.lines:
            l = l.strip()
            it.append(("s" if l.startswith("s_") else "v", l))
        it.append(("l", "ds_write_b128 v8, %s" % v(T + 4, 4), "xw"))
        it.append(("l", "ds_write_b128 v8, %s offset:256" % v(V_L, 4), "xw"))
        for x in range(8):
            for rt in range(4):
                i = rt * 8 + x
                if i < 28:
                    it.append(("l", "ds_write_b128 v6, %s offset:%d" % (a(128 + 4 * i, 4), XS(i)), "xw"))
        f0 = Fill(it, spacing=o.get("xsp", 2))
        if not fused:
            return f0
        it = []
        for c in range(2):
            it.append(("s", "s_add_u32 s26, s24, %d" % PD_OFF))
            for g in range(7):
                it.append(("m", "buffer_load_dwordx4 %s, %s, %s, s26 offen sc1" % (a(32 * c + 4 * g, 4), v(V_PO[c]), s(S_WS, 4))))
                if g < 6:
                    it.append(("s", "s_add_u32 s26, s26, %d" % (32 * PART)))
            for k in range(2):
                it.append(("m", "buffer_load_dwordx2 %s, %s, %s, s25 offen offset:%d" % (a(32 * c + 28 + 2 * k, 2), v(V_XO[c]), s(S_X2, 4), 32 * k)))
        return Fill2(f0, Fill(it, spacing=3))

    ex = at.main(cv[ncv:], stores, last_fill, signal=("L_sig", "L_sigback") if fused else None,
                 after_loop=(lambda: tail_addresses(A)) if fused else None)
    stamp()
    A.e("s_barrier")
    ex.flush(A)
    for i in range(28, 32):
        A.e("ds_write_b128 v6, %s offset:%d" % (a(128 + 4 * i, 4), XS(i)))
    voffsets(A, V_OFF_O, V_OFF_O + 4, 896, False, 8, 24, True)
    A.e("s_mul_i32 %s, %s, %d" % (s(S_RING), s(S_W), NS_O * HS))
    A.e("s_add_u32 %s, %s, %d" % (s(S_RING), s(S_RING), RING_O))
    wa_lane(A, V_WA, 24)
    A.e("v_add_u32 %s, %s, %s" % (v(V_WA), s(S_RING), v(V_WA)))
    A.e("v_and_b32 v24, 15, v0")
    A.e("v_lshrrev_b32 v25, 4, v0")
    A.e("v_lshlrev_b32 %s, 4, v24" % v(V_BA))
    A.e("v_lshl_add_u32 %s, v25, 10, %s" % (v(V_BA), v(V_BA)))
    A.e("s_lshl_b32 s27, %s, 1" % s(S_HH))
    A.e("s_add_u32 s27, s27, %s" % s(S_KH))
    A.e("s_lshl_b32 s27, s27, 14")
    A.e("v_add_u32 v10, s27, %s" % v(V_BA))
    for rt in range(4):
        A.e("v_mov_b32 %s, %s" % (v(20 + rt), v(T + 4 + rt)))
    T = 16
    A.lds_drain()
    A.e("s_barrier")
    A.lds("ds_read_b128 %s, v9" % v(T + 8, 4), "ml")
    A.lds("ds_read_b128 %s, v9 offset:256" % v(T + 12, 4), "ml")
    RX = 36
    for i in range(13):
        A.lds("ds_read_b128 %s, v7 offset:%d" % (v(RX + 4 * i, 4), XS(i)), "r%d" % i)
    A.need("ml")
    for i in range(13, 16):
        A.lds("ds_read_b128 %s, v7 offset:%d" % (v(RX + 4 * i, 4), XS(i)), "r%d" % i)
    for rt in range(4):
        no, npn, lo, lp = T + 4 + rt, T + 8 + rt, V_L + rt, T + 12 + rt
        A.e("v_min_f32 %s, %s, %s" % (v(T), v(no), v(npn)))
        A.e("v_sub_f32 %s, %s, %s" % (v(no), v(T), v(no)))
        A.e("v_sub_f32 %s, %s, %s" % (v(npn), v(T), v(npn)))
        A.e("v_exp_f32 %s, %s" % (v(no), v(no)))
        A.e("v_exp_f32 %s, %s" % (v(npn), v(npn)))
        A.e("v_mul_f32 %s, %s, %s" % (v(lo), v(lo), v(no)))
        A.e("v_fma_f32 %s, %s, %s, %s" % (v(lo), v(lp), v(npn), v(lo)))
        A.e("v_rcp_f32 %s, %s" % (v(lo), v(lo)))
        A.e("s_nop 0")
        A.e("v_mul_f32 %s, %s, %s" % (v(no), v(no), v(lo)))
        A.e("v_mul_f32 %s, %s, %s" % (v(npn), v(npn), v(lo)))

    def bsel(r):
        return v(r & ~1, 2), r & 1

    def combine(i, rx):
        rt, x = i >> 3, i & 7
        r = 128 + 4 * i
        so, so_b = bsel(T + 4 + rt)
        sp, sp_b = bsel(T + 8 + rt)
        for k in range(2):
            A.e("v_pk_mul_f32 %s, %s, %s op_sel:[0,%d] op_sel_hi:[1,%d]" % (v(r + 2 * k, 2), v(r + 2 * k, 2), so, so_b, so_b))
        for k in range(2):
            A.e("v_pk_fma_f32 %s, %s, %s, %s op_sel:[0,%d,0] op_sel_hi:[1,%d,1]" % (
                v(r + 2 * k, 2), v(rx + 2 * k, 2), sp, v(r + 2 * k, 2), sp_b, sp_b))
        d = 128 + 4 * (i & ~1) + 2 * (i & 1)
        for k in range(2):
            A.e("v_cvt_pk_bf16_f32 %s, %s, %s" % (v(d + k), v(r + 2 * k), v(r + 2 * k + 1)))

    for i in range(16):
        A.need("r%d" % i)
        combine(i, RX + 4 * i)
        A.lds("ds_read_b128 %s, v7 offset:%d" % (v(RX + 4 * i, 4), XS(16 + i)), "r%d" % (16 + i))
    A.lds_drain()
    A.e("s_barrier")
    OP = Phase("o", 16, S_WO, S_WO, V_OFF_O, V_OFF_O + 4, 896, 0)
    so = Stream(A, [OP], NS_O, 0, tail_swap=True)
    A.vm_q = []
    dq2 = [op for h in range(so.lead) for op in so.dma_ops(h)]

    def owrite(i):
        rt, p = i >> 3, (i & 7) >> 1
        A.lds("ds_write_b128 v10, %s offset:%d" % (v(128 + 4 * (i & ~1), 4), p * 4096 + rt * 256), "ow")

    for i in range(16, 32):
        pre, ld, tag = dq2.pop(0)
        for t in pre:
            A.e(t)
        if i < 24:
            owrite(2 * (i - 16) + 1)
        else:
            A.e("s_nop 0")
        A.vm(ld, tag)
        combine(i, RX + 4 * (i - 16))
        if i & 1:
            owrite(i)
    assert not dq2
    so.first_a()
    A.need("ow")
    A.e("s_barrier")
    so.first_b(0)
    stamp()
    pops = []

    def early_stores():
        pops.extend(partial_ops(A, PS_OFF, S_WS, 100, 101, staux))
        cv, stores = pops
        it = []
        for k in range(8):
            it += cv[4 * k:4 * k + 4]
            while stores[0][0] == "s":
                it.append(stores.pop(0))
            it.append(stores.pop(0))
        return Fill(it, spacing=3)

    so.run_phase("o", extra={-2: early_stores})
    so.last_fill.flush(A)
    stamp()
    A.e("s_nop 4")
    cv, stores = pops
    for k in range(8, 16):
        for it in cv[4 * k:4 * k + 4]:
            A.e(it[1])
        while stores[0][0] == "s":
            A.e(stores.pop(0)[1])
        A.e(stores.pop(0)[1])
    if fused:
        fused_tail(A, o, stamp)
    if o.get("stamps"):
        A.e("s_waitcnt vmcnt(0)")
        stamp(True)
        A.e("s_memrealtime s[98:99]")
        A.e("s_waitcnt lgkmcnt(0)")
        A.e("v_writelane_b32 v35, s100, 30")
        A.e("v_writelane_b32 v35, s98, 31")
        A.e("s_lshl_b32 s27, s2, 2")
        A.e("s_add_u32 s27, s27, %s" % s(S_W))
        A.e("s_lshl_b32 s27, s27, 8")
        A.e("s_add_u32 s27, s27, 0x4000000")
        A.e("v_lshlrev_b32 v2, 2, v0")
        A.e("buffer_store_dword v35, v2, %s, s27 offen" % s(S_WS, 4))
    A.label("L_done")
    A.e("s_endpgm")
    A.label("L_hot_end")
    if fused:
        A.label("L_sig")
        A.e("s_lshl_b32 s27, %s, 2" % s(S_RB))
        A.e("s_cmp_eq_u32 %s, 0" % s(S_CNT))
        A.e("s_cbranch_scc1 L_sig0")
        A.e("buffer_load_dword %s, off, %s, s27 sc1" % (v(V_POLL), s(S_DBG, 4)))
        A.e("s_branch L_sigback")
        A.label("L_sig0")
        A.e("s_cmp_lg_u32 %s, 0" % s(S_W))
        A.e("s_cbranch_scc1 L_sigback")
        A.e("v_mov_b32 v6, 1")
        A.e("s_mov_b64 exec, 1")
        A.e("buffer_atomic_add v6, off, %s, s27 sc1" % s(S_DBG, 4))
        A.e("s_mov_b64 exec, -1")
        A.e("s_branch L_sigback")
        A.label("L_spinD")
        A.e("s_mov_b32 s28, 0")
        A.e("s_lshl_b32 s27, %s, 2" % s(S_RB))
        A.label("L_spinD1")
        A.e("s_sleep 4")
        A.e("buffer_load_dword %s, off, %s, s27 sc1" % (v(V_POLL), s(S_DBG, 4)))
        A.e("s_add_u32 s28, s28, 1")
        A.e("s_waitcnt vmcnt(0)")
        A.e("v_readfirstlane_b32 s29, %s" % v(V_POLL))
        A.e("s_cmp_gt_u32 s28, 0x8000")
        A.e("s_cbranch_scc1 L_okD")
        A.e("s_cmp_ge_u32 s29, 8")
        A.e("s_cbranch_scc0 L_spinD1")
        A.e("s_branch L_okD")
    at.rare_paths()


def gen_reduce(A, o):
    A.raw(kernel_header(KRED))
    A.e("s_cmp_ge_u32 s2, 448")
    A.e("s_cbranch_scc1 L_rdone")
    A.e("s_load_dwordx2 s[4:5], s[0:1], 0")
    A.e("s_load_dwordx2 s[8:9], s[0:1], 72")
    A.e("s_load_dwordx2 s[12:13], s[0:1], 88")
    A.e("s_mul_hi_u32 s16, s2, %d" % ((2 ** 32 + 13) // 14))
    A.e("s_mul_i32 s17, s16, 14")
    A.e("s_sub_u32 s17, s2, s17")
    A.e("s_mul_i32 s18, s16, %d" % PART)
    A.e("s_lshl_b32 s19, s17, 12")
    A.e("s_add_u32 s18, s18, s19")
    A.e("v_lshlrev_b32 v1, 4, v0")
    A.e("v_lshrrev_b32 v2, 6, v0")
    A.e("v_and_b32 v3, 15, v0")
    A.e("v_lshl_add_u32 v2, v2, 4, v3")
    A.e("v_mul_u32_u24 v2, 896, v2")
    A.e("v_bfe_u32 v3, v0, 4, 2")
    A.e("v_lshl_add_u32 v2, v3, 3, v2")
    A.e("s_mul_i32 s20, s16, %d" % (64 * 896))
    A.e("s_lshl_b32 s21, s17, 6")
    A.e("s_add_u32 s20, s20, s21")
    A.e("s_waitcnt lgkmcnt(0)")
    A.e("s_mov_b32 s6, %d" % (2048 * 896))
    A.e("s_mov_b32 s7, 0x20000")
    A.e("s_mov_b32 s10, %d" % (2048 * 896))
    A.e("s_mov_b32 s11, 0x20000")
    A.e("s_mov_b32 s14, 0x10000000")
    A.e("s_mov_b32 s15, 0x20000")
    R = 8
    A.e("s_add_u32 s19, s18, %d" % PD_OFF)
    for g in range(7):
        A.vm("buffer_load_dwordx4 %s, v1, s[12:15], s19 offen" % v(R + 4 * g, 4), "d%d" % g)
        A.e("s_add_u32 s19, s19, %d" % (32 * PART))
    A.e("s_add_u32 s19, s18, %d" % PS_OFF)
    for g in range(8):
        A.vm("buffer_load_dwordx4 %s, v1, s[12:15], s19 offen" % v(R + 28 + 4 * g, 4), "s%d" % g)
        A.e("s_add_u32 s19, s19, %d" % (32 * PART))
    A.vm("buffer_load_dwordx2 v[4:5], v2, s[4:7], s20 offen", "x")
    A.vm("buffer_load_dwordx2 v[6:7], v2, s[4:7], s20 offen offset:32", "x")
    A.e("s_mov_b32 s31, 0xffff0000")

    def ns(g):
        A.vneed("s%d" % g)
        if g == 7:
            A.vneed("x")
    final_math(A, R, R + 28, 4, 68, 76, 84, lambda g: A.vneed("d%d" % g), ns)
    A.e("buffer_store_dwordx2 v[4:5], v2, s[8:11], s20 offen")
    A.e("buffer_store_dwordx2 v[6:7], v2, s[8:11], s20 offen offset:32")
    A.label("L_rdone")
    A.e("s_endpgm")


HEADER = open("cdna_kernels/%s.s.ref" % BASE).read().split("; Override launch")[0]


def gen(o):
    A = Asm()
    A.raw(HEADER.rstrip())
    fused = o.get("fused", 1)
    if fused:
        A.raw("; @launch grid=(256,1,1) block=(256,1,1) lds=163840")
    else:
        A.raw("; @launch kernel=%s grid=(256,1,1) block=(256,1,1) lds=163840" % KMAIN)
        if not o.get("nored"):
            A.raw("; @launch kernel=%s grid=(448,1,1) block=(256,1,1) lds=0" % KRED)
    A.raw('.amdgcn_target "amdgcn-amd-amdhsa--gfx950"')
    A.raw(".text")
    gen_main(A, o)
    A.vm_q = []
    A.lds_q = []
    if not fused:
        gen_reduce(A, o)
    A.raw('.section .rodata,"a"')
    A.raw(".p2align 6")
    A.raw(kernel_desc(KMAIN, 512, 256))
    if not fused:
        A.raw(".p2align 6")
        A.raw(kernel_desc(KRED, 96, 96, sgpr=32))
    return A.text()


if __name__ == "__main__":
    o = json.loads(sys.argv[2]) if len(sys.argv) > 2 else {}
    open(sys.argv[1], "w").write(gen(o))
```
